```python
import torch

def _softmax(x, axis=-1):
    return torch.softmax(x, dim=axis)
def _gelu(x):
    return torch.nn.functional.gelu(x, approximate="tanh")
def _silu(x):
    return torch.nn.functional.silu(x)
def _sigmoid(x):
    return torch.sigmoid(x)
def _layernorm(x, axis=-1, eps=1e-5):
    m = x.mean(dim=axis, keepdim=True)
    v = x.var(dim=axis, keepdim=True, unbiased=False)
    return (x - m) / torch.sqrt(v + eps)
def _scatter_add(tgt, idx, src, axis=0):
    return tgt.clone().index_add_(axis, idx, src)
def _segment_sum(src, seg, n):
    out = torch.zeros((n,) + src.shape[1:], dtype=src.dtype)
    return out.index_add_(0, seg, src)
def _pad(x, pw):
    flat = tuple(v for pair in reversed(pw) for v in pair)
    return torch.nn.functional.pad(x, flat)

kernel_name = 'gated_mix__ssm_conv_s5__glu_gated_swiglu__prompt'

def setup_inputs():

    _w = (lambda a: (lambda t: t.to(torch.bfloat16) if t.is_floating_point() else t)(torch.as_tensor(a)))
    def _A_setup():
        B, S, D = 1, 2048, 512
        P = D
        Lambda_re = -0.5 * (lambda _x: torch.exp(torch.as_tensor(_x)))((lambda *s: torch.randn(*s, dtype=torch.bfloat16) * 0.2)(P))
        Lambda_im = (lambda *s: torch.randn(*s, dtype=torch.bfloat16) * 0.4)(P) * 1.0
        B_re = (lambda *s: torch.randn(*s, dtype=torch.bfloat16) * 0.2)(P, D) * (D ** -0.5)
        B_im = (lambda *s: torch.randn(*s, dtype=torch.bfloat16) * 0.2)(P, D) * (D ** -0.5)
        C_re = (lambda *s: torch.randn(*s, dtype=torch.bfloat16) * 0.2)(D, P) * (P ** -0.5)
        C_im = (lambda *s: torch.randn(*s, dtype=torch.bfloat16) * 0.2)(D, P) * (P ** -0.5)
        log_dt = (lambda *s: torch.randn(*s, dtype=torch.bfloat16) * 0.2)(P) * 0.3 - 2.0
        Dskip = (lambda *s: torch.randn(*s, dtype=torch.bfloat16) * 0.05)(D)
        return {
            "x": _w((lambda *s: torch.randn(*s, dtype=torch.bfloat16) * 0.05)(B, S, D)),
            "Lambda_re": _w(Lambda_re),
            "Lambda_im": _w(Lambda_im),
            "B_re": _w(B_re),
            "B_im": _w(B_im),
            "C_re": _w(C_re),
            "C_im": _w(C_im),
            "log_dt": _w(log_dt),
            "Dskip": _w(Dskip),
        }
    _A_in = _A_setup()

    def _B_setup():
        B, S, D, F = 1, 2048, 512, 1792
        return {
            "x": _w((lambda *s: torch.randn(*s, dtype=torch.bfloat16) * 0.05)(B, S, D)),
            "w1": _w((lambda *s: torch.randn(*s, dtype=torch.bfloat16) * 0.8)(D, F) * (2.0 / D) ** 0.5),
            "w3": _w((lambda *s: torch.randn(*s, dtype=torch.bfloat16) * 0.8)(D, F) * (2.0 / D) ** 0.5),
            "w2": _w((lambda *s: torch.randn(*s, dtype=torch.bfloat16) * 0.8)(F, D) * (2.0 / F) ** 0.5),
        }
    _B_in = _B_setup()

    return {
        "A_x": _A_in["x"],
        "A_Lambda_re": _A_in["Lambda_re"],
        "A_Lambda_im": _A_in["Lambda_im"],
        "A_B_re": _A_in["B_re"],
        "A_B_im": _A_in["B_im"],
        "A_C_re": _A_in["C_re"],
        "A_C_im": _A_in["C_im"],
        "A_log_dt": _A_in["log_dt"],
        "A_Dskip": _A_in["Dskip"],
        "B_x": _B_in["x"],
        "B_w1": _B_in["w1"],
        "B_w3": _B_in["w3"],
        "B_w2": _B_in["w2"],
        "gate_w": _w((lambda *s: torch.randn(*s, dtype=torch.bfloat16) * 0.05)(512) * 16.0),
    }

def reference(A_x, A_Lambda_re, A_Lambda_im, A_B_re, A_B_im, A_C_re, A_C_im, A_log_dt, A_Dskip, B_x, B_w1, B_w3, B_w2, gate_w):
    def _A_ref(x, Lambda_re, Lambda_im, B_re, B_im, C_re, C_im, log_dt, Dskip):
        Bsz, L, H = x.shape
        Lam = Lambda_re + 1j * Lambda_im
        Bmat = B_re + 1j * B_im
        Cmat = C_re + 1j * C_im
        dt = torch.exp(log_dt)
        Lam_bar = torch.exp(dt * Lam)
        B_bar = ((Lam_bar - 1.0) / Lam)[:, None] * Bmat
        Bu = torch.einsum("bld,pd->blp", x + 0j, B_bar)
        h = torch.zeros_like(Bu[:, 0, :])
        hs = []
        for t in range(L):
            h = Lam_bar[None, :] * h + Bu[:, t, :]
            hs.append(h)
        hseq = torch.stack(hs, 1)
        y = 2.0 * torch.einsum("blp,dp->bld", hseq, Cmat).real + x * Dskip[None, None, :]
        return y

    def _B_ref(x, w1, w3, w2):
        gate = torch.einsum("bsd,df->bsf", x, w1)
        up = torch.einsum("bsd,df->bsf", x, w3)
        h = _silu(gate) * up
        out = torch.einsum("bsf,fd->bsd", h, w2)
        return out

    x = A_x
    g = _sigmoid((x * gate_w).sum(-1, keepdims=True))
    a = _A_ref(x, A_Lambda_re, A_Lambda_im, A_B_re, A_B_im, A_C_re, A_C_im, A_log_dt, A_Dskip)
    b = _B_ref(x, B_w1, B_w3, B_w2)
    return g * a + (1 - g) * b
```

```python
class E:
    def __init__(s):
        s.L=[]; s.vmq=[]; s.lgq=[]; s.nl=0
    def i(s,t):
        for x in t.split("\n"):
            x=x.strip()
            if x: s.L.append(("" if x.endswith(":") else "  ")+x)
    def vm(s,t,tag=None): s.i(t); s.vmq.append(tag)
    def ds(s,t,tag=None): s.i(t); s.lgq.append(tag)
    def _n(s,q,tag):
        idx=[k for k,x in enumerate(q) if x==tag]
        if not idx: return None
        return len(q)-1-idx[-1]
    def wait(s,vm=None,lg=None):
        p=[]
        if vm is not None:
            n=0 if vm=="*" else s._n(s.vmq,vm)
            if n is not None and (s.vmq or vm=="*"):
                n=min(n,63); p.append(f"vmcnt({n})"); s.vmq=s.vmq[len(s.vmq)-n:] if n else []
        if lg is not None:
            n=0 if lg=="*" else s._n(s.lgq,lg)
            if n is not None and (s.lgq or lg=="*"):
                n=min(n,15); p.append(f"lgkmcnt({n})"); s.lgq=s.lgq[len(s.lgq)-n:] if n else []
        if p: s.i("s_waitcnt "+" ".join(p))
    def label(s,p="L"):
        s.nl+=1; return f"{p}{s.nl}"
    def state(s): return (list(s.vmq),list(s.lgq))
    def restore(s,st): s.vmq,s.lgq=list(st[0]),list(st[1])
def vr(a,n=1): return f"v{a}" if n==1 else f"v[{a}:{a+n-1}]"
def sr(a,n=1): return f"s{a}" if n==1 else f"s[{a}:{a+n-1}]"
class Fill:
    def __init__(s): s.q=[]
    def add(s,fn): s.q.append(fn)
    def text(s,e,t):
        cur=[]
        for x in t.split("\n"):
            x=x.strip()
            if not x: continue
            cur.append(x)
            if x.startswith("s_") and not x.startswith("s_nop"): continue
            s.q.append(lambda y="\n".join(cur): e.i(y)); cur=[]
        assert not cur
    def run(s,n):
        while n>0 and s.q: s.q.pop(0)(); n-=1
    def flush(s): s.run(1<<30)
```

```python
from emit import *
S_OFF=0xC00000; G_OFF=0xC10000; F_OFF=0xC20000; PROF=0xD00000; WS_SIZE=0xE00000
SCR=131072
LOG2E="0x3fb8aa3b"; NLOG2E="0xbfb8aa3b"
X=0; AF=128; AS=160; FB=176; RA=208; RW=212; DX=214; DW=216; DB=218; L16=219; LANE=220; SA=221
LAM=222; L8=224; L16P=226; L32=228; L128=230; L512=232; L1024=234; LQ=236; LP=238; CO=240; T=242; PV=255
class Cfg:
    prof=0; pre_bar=1; merged=0; st="sc1"
def stamp(e,c,idx,real=False):
    if not c.prof: return
    e.i(f"{'s_memrealtime' if real else 's_memtime'} s[92:93]"); e.wait(lg="*"); e.i(f"v_writelane_b32 v{PV}, s92, {idx}")
def prof_end(e,c,kid):
    if not c.prof: return
    stamp(e,c,62); stamp(e,c,63,True)
    e.i(f"s_lshl_b32 s92, s2, 3\ns_add_u32 s92, s92, s4\ns_lshl_b32 s92, s92, 8\ns_add_u32 s92, s92, {PROF+kid*0x80000}")
    e.i(f"v_mbcnt_lo_u32_b32 v254, -1, 0\nv_mbcnt_hi_u32_b32 v254, -1, v254\nv_lshlrev_b32 v254, 2, v254")
    e.vm(f"buffer_store_dword v{PV}, v254, s[28:31], s92 offen")
def srd(e,d,p,n):
    e.i(f"s_mov_b32 s{d}, s{p}\ns_mov_b32 s{d+1}, s{p+1}\ns_mov_b32 s{d+2}, {n}\ns_mov_b32 s{d+3}, 0x20000")
def tau(e,d,s,t):
    e.i(f"v_and_b32 v{d}, 4, v{s}\nv_lshlrev_b32 v{d}, 2, v{d}\nv_and_or_b32 v{d}, v{s}, 3, v{d}\nv_lshrrev_b32 v{t}, 3, v{s}\nv_lshl_or_b32 v{d}, v{t}, 2, v{d}")
def cmac(d,a,b):
    return f"v_fmac_f32 v{d[0]}, v{a[0]}, v{b[0]}\nv_fmac_f32 v{d[1]}, v{a[0]}, v{b[1]}\nv_fma_f32 v{d[0]}, -v{a[1]}, v{b[1]}, v{d[0]}\nv_fmac_f32 v{d[1]}, v{a[1]}, v{b[0]}\n"
def P(x): return (x,x+1)
def csq(d,s,t): return f"v_mul_f32 v{t}, v{s+1}, v{s+1}\nv_mul_f32 v{t+1}, v{s}, v{s+1}\nv_fma_f32 v{d}, v{s}, v{s}, -v{t}\nv_add_f32 v{d+1}, v{t+1}, v{t+1}\n"
def cis(d,la,rev,t):
    return f"v_rndne_f32 v{t}, v{rev}\nv_exp_f32 v{t+1}, v{la}\nv_sub_f32 v{t}, v{rev}, v{t}\nv_cos_f32 v{d}, v{t}\nv_sin_f32 v{d+1}, v{t}\ns_nop 0\nv_mul_f32 v{d}, v{d}, v{t+1}\nv_mul_f32 v{d+1}, v{d+1}, v{t+1}\n"
def combine(ee,A,C,La,Lb):
    s=f"v_mov_b32 v{A}, v{ee}\nv_mov_b32 v{A+1}, v{ee+1}\ns_nop 1\nv_permlane16_swap_b32 v{A}, v{ee}\nv_permlane16_swap_b32 v{A+1}, v{ee+1}\ns_nop 0\n"
    s+=cmac(P(ee),P(La),P(A))
    s+=f"v_mov_b32 v{C}, v{ee}\nv_mov_b32 v{C+1}, v{ee+1}\ns_nop 1\nv_permlane32_swap_b32 v{C}, v{ee}\nv_permlane32_swap_b32 v{C+1}, v{ee+1}\ns_nop 0\n"
    s+=cmac(P(ee),P(Lb),P(C))
    return s
def common_prologue(e,c):
    e.i("s_cmp_ge_u32 s2, 256\ns_cbranch_scc1 Lexit")
    e.i("s_load_dwordx16 s[36:51], s[0:1], 0\ns_load_dwordx16 s[52:67], s[0:1], 64\ns_load_dwordx2 s[68:69], s[0:1], 128")
    e.i(f"v_lshrrev_b32 v1, 6, v0\nv_and_b32 v{LANE}, 63, v0\nv_readfirstlane_b32 s4, v1\nv_lshlrev_b32 v{L16}, 4, v{LANE}")
def dma(e,ldsb,ldso,voff,srdn,soff,tag,sbase=None):
    e.i(f"s_add_u32 m0, s{ldsb}, {ldso}")
    e.i(f"s_mov_b32 s74, {soff}" if sbase is None else f"s_add_u32 s74, s{sbase}, {soff}")
    e.vm(f"buffer_load_dwordx4 v{voff}, s[{srdn}:{srdn+3}], s74 offen lds",tag)
def p1_dmas(e,s):
    sl=(s%4)*16384; tg=("d",s); L=[]
    if s<8:
        for q in range(2): L.append(lambda q=q: dma(e,71,sl+q*1024,DX+q,8,128*s,tg))
        for mt in range(2): L.append(lambda mt=mt: dma(e,72,65536+sl+mt*8192,DW+mt,12+4*mt,s*64*3584,tg))
    elif s<10:
        for cp in range(2):
            for sc in range(2): L.append(lambda cp=cp,sc=sc: dma(e,73,cp*65536+sl+sc*4096,DB,20+4*cp,512*(s-8)+128*sc,tg))
    elif s<14:
        for h in range(2):
            for mt in range(2): L.append(lambda h=h,mt=mt: dma(e,72,mt*65536+sl+h*8192,DW+mt,12+4*mt,(128*(s-10)+64*h)*3584+128,tg))
    return L
def ffn_epi(e,c,F,G):
    for t in range(2):
        a=AF+16*t; R=range(8)
        F.text(e,"".join(f"v_mul_f32 v{a+8+r}, v{a+r}, v{a+8+r}\n" for r in R))
        for op in (f"v_mul_f32 v{{0}}, {NLOG2E}, v{{0}}","v_exp_f32 v{0}, v{0}","v_add_f32 v{0}, 1.0, v{0}","v_rcp_f32 v{0}, v{0}"):
            F.text(e,"".join(op.format(a+r)+"\n" for r in R))
        F.text(e,"".join(f"v_mul_f32 v{a+8+r}, v{a+r}, v{a+8+r}\n" for r in R))
        F.text(e,"".join(f"v_cvt_pk_bf16_f32 v{a+k}, v{a+8+2*k}, v{a+9+2*k}\n" for k in range(4)))
        F.add(lambda t=t,a=a: (e.i(f"s_add_u32 s74, s75, {(4*G+t)*1024}"), e.vm(f"buffer_store_dwordx4 v[{a}:{a+3}], v{L16}, s[32:35], s74 offen {c.st}",("h",G))))
def ssm_consts(e,F):
    lr,li,ld=T,T+1,T+2; t=T+4
    F.add(lambda: e.wait(vm="c"))
    s=f"v_lshlrev_b32 v{lr}, 16, v{lr}\nv_lshlrev_b32 v{li}, 16, v{li}\nv_lshlrev_b32 v{ld}, 16, v{ld}\nv_mul_f32 v{ld}, {LOG2E}, v{ld}\nv_exp_f32 v{ld}, v{ld}\ns_nop 0\nv_cvt_pk_bf16_f32 v{ld}, v{ld}, v{ld}\nv_lshlrev_b32 v{ld}, 16, v{ld}\n"
    la,rev=T+6,T+7
    s+=f"v_mul_f32 v{la}, v{ld}, v{lr}\nv_mul_f32 v{rev}, v{ld}, v{li}\nv_mul_f32 v{la}, {LOG2E}, v{la}\nv_mul_f32 v{rev}, 0.15915494, v{rev}\n"
    s+=cis(LAM,la,rev,t)
    s+=f"v_mul_f32 v{t}, v{lr}, v{lr}\nv_fmac_f32 v{t}, v{li}, v{li}\nv_rcp_f32 v{t}, v{t}\nv_add_f32 v{t+1}, -1.0, v{LAM}\nv_add_f32 v{t}, v{t}, v{t}\n"
    s+=f"v_mul_f32 v{CO}, v{t+1}, v{lr}\nv_mul_f32 v{CO+1}, v{LAM+1}, v{lr}\nv_fmac_f32 v{CO}, v{LAM+1}, v{li}\nv_fma_f32 v{CO+1}, -v{t+1}, v{li}, v{CO+1}\nv_mul_f32 v{CO}, v{CO}, v{t}\nv_mul_f32 v{CO+1}, v{CO+1}, v{t}\n"
    n=T+3
    s+=f"v_lshrrev_b32 v{n}, 4, v{LANE}\nv_lshlrev_b32 v{n}, 3, v{n}\nv_cvt_f32_u32 v{n}, v{n}\nv_mul_f32 v{lr}, v{la}, v{n}\nv_mul_f32 v{li}, v{rev}, v{n}\n"+cis(LQ,lr,li,t)
    s+=f"s_lshl_b32 s3, s7, 5\nv_cvt_f32_u32 v{ld}, s3\nv_add_f32 v{n}, v{n}, v{ld}\nv_mul_f32 v{lr}, v{la}, v{n}\nv_mul_f32 v{li}, v{rev}, v{n}\n"+cis(LP,lr,li,t)
    s+=csq(L8,LAM,t)+csq(L8,L8,t)+csq(L8,L8,t)+csq(L16P,L8,t)+csq(L32,L16P,t)+csq(L128,L32,t)+csq(L128,L128,t)+csq(L512,L128,t)+csq(L512,L512,t)+csq(L1024,L512,t)
    F.text(e,s)
PP=RA
def ssm_a(e,F):
    s="".join(f"v_permlane16_swap_b32 v{AS+r}, v{AS+8+r}\n" for r in range(8))
    for r in range(8):
        zr,zi=AS+r,AS+8+r; t=T+2*(r&1)
        s+=f"v_mul_f32 v{t}, v{CO+1}, v{zi}\nv_mul_f32 v{t+1}, v{CO+1}, v{zr}\nv_fma_f32 v{zr}, v{CO}, v{zr}, -v{t}\nv_fma_f32 v{zi}, v{CO}, v{zi}, v{t+1}\n"
    prev=(AS,AS+8)
    for r in range(1,8):
        n=P(T+2*(r&1))
        s+=f"v_fma_f32 v{n[0]}, v{LAM}, v{prev[0]}, v{AS+r}\nv_fma_f32 v{n[1]}, v{LAM}, v{prev[1]}, v{AS+8+r}\nv_fma_f32 v{n[0]}, -v{LAM+1}, v{prev[1]}, v{n[0]}\nv_fmac_f32 v{n[1]}, v{LAM+1}, v{prev[0]}\n"
        prev=n
    ee=T+2; A=T+4; C=T+6
    s+=combine(ee,A,C,L8,L16P)
    F.text(e,s)
    F.add(lambda: e.ds(f"ds_write_b64 v{SA}, v[{ee}:{ee+1}]","sw"))
    s=f"v_cndmask_b32 v{A}, 0, v{A}, s[76:77]\nv_cndmask_b32 v{A+1}, 0, v{A+1}, s[76:77]\nv_cndmask_b32 v{PP}, v{A}, v{C}, s[78:79]\nv_cndmask_b32 v{PP+1}, v{A+1}, v{C+1}, s[78:79]\n"
    s+=cmac(P(A),P(L8),P(C))+f"v_cndmask_b32 v{PP}, v{PP}, v{A}, s[80:81]\nv_cndmask_b32 v{PP+1}, v{PP+1}, v{A+1}, s[80:81]\n"
    F.text(e,s)
def ssm_b(e,F):
    W=T; R=T+8; ad=T+10
    F.text(e,f"s_lshl_b32 s3, s7, 7\nv_subrev_u32 v{ad}, s3, v{SA}")
    for k in range(4): F.add(lambda k=k: e.ds(f"ds_read_b64 v[{W+2*k}:{W+2*k+1}], v{ad} offset:{128*k}","sr"))
    F.add(lambda: e.vm(f"global_load_dword v{RA+2}, v{RA+3}, s[66:67] sc1","cnt"))
    F.add(lambda: e.wait(lg="sr"))
    s=cmac(P(W+2),P(L32),P(W))+cmac(P(W+4),P(L32),P(W+2))+cmac(P(W+6),P(L32),P(W+4))
    for k in range(2): s+=f"v_cmp_eq_u32 vcc, -1, v{W+6+k}\nv_mov_b32 v{ad}, 0x7fc00000\ns_nop 0\nv_cndmask_b32 v{W+6+k}, v{W+6+k}, v{ad}, vcc\n"
    s+=f"v_and_b32 v{ad}, 15, v{LANE}\nv_lshlrev_b32 v{ad}, 3, v{ad}\ns_lshl_b32 s3, s5, 8\ns_lshl_b32 s74, s70, 7\ns_add_u32 s3, s3, s74\n"
    s+=f"s_cmp_eq_u32 s7, 0\ns_cselect_b32 s3, s3, 0x10000\nv_add_u32 v{ad}, s3, v{ad}\n"
    F.text(e,s)
    F.add(lambda: (e.i("s_mov_b64 exec, 0xffff"), e.vm(f"buffer_store_dwordx2 v[{W+6}:{W+7}], v{ad}, s[88:91], 0 offen sc1","pub"), e.i("s_mov_b64 exec, -1")))
    s=""
    for k in range(2):
        s+=f"v_cndmask_b32 v{R+k}, 0, v{W+k}, s[82:83]\nv_cndmask_b32 v{R+k}, v{R+k}, v{W+2+k}, s[84:85]\nv_cndmask_b32 v{R+k}, v{R+k}, v{W+4+k}, s[86:87]\n"
    F.text(e,s+cmac(P(PP),P(LQ),P(R)))
def cnt_check(e):
    e.wait(vm="cnt"); ok=e.label(); lp=e.label()
    e.i(f"s_mov_b32 s94, 0\n{lp}:\nv_readfirstlane_b32 s3, v{RA+2}\ns_add_u32 s94, s94, 1\ns_cmp_ge_u32 s3, 16\ns_cbranch_scc1 {ok}\ns_cmp_ge_u32 s94, 0x40000\ns_cbranch_scc1 {ok}\ns_sleep 2")
    e.i(f"global_load_dword v{RA+2}, v{RA+3}, s[66:67] sc1\ns_waitcnt vmcnt(0)\ns_branch {lp}\n{ok}:")
U=T; UB=RA+3
def poll_issue(e,track=True):
    for k in range(4):
        e.i(f"v_add_u32 v{U+2*k}, {256*k}, v{UB}")
    for k in range(4):
        t=f"buffer_load_dwordx2 v[{U+2*k}:{U+2*k+1}], v{U+2*k}, s[88:91], 0 offen sc1"
        e.vm(t,"poll") if track else e.i(t)
def poll_prep(e):
    e.i(f"v_lshrrev_b32 v{UB}, 4, v{LANE}\nv_lshlrev_b32 v{UB}, 10, v{UB}\nv_and_b32 v{U}, 15, v{LANE}\nv_lshl_add_u32 v{UB}, v{U}, 3, v{UB}")
    e.i(f"s_sub_u32 s3, s5, 16\ns_lshl_b32 s3, s3, 8\ns_lshl_b32 s74, s70, 7\ns_add_u32 s3, s3, s74\nv_add_u32 v{UB}, s3, v{UB}")
def poll_check(e):
    e.wait(vm="poll"); ok=e.label(); lp=e.label(); t=T+8
    e.i(f"s_mov_b32 s94, 0\n{lp}:\nv_max3_u32 v{t}, v{U}, v{U+1}, v{U+2}\nv_max3_u32 v{t}, v{t}, v{U+3}, v{U+4}\nv_max3_u32 v{t}, v{t}, v{U+5}, v{U+6}\nv_max_u32 v{t}, v{t}, v{U+7}")
    e.i(f"v_cmp_eq_u32 vcc, -1, v{t}\ns_add_u32 s94, s94, 1\ns_nop 3\ns_cbranch_vccz {ok}\ns_cmp_ge_u32 s94, 0x40000\ns_cbranch_scc1 {ok}\ns_sleep 1")
    poll_issue(e,False); e.i(f"s_waitcnt vmcnt(0)\ns_branch {lp}\n{ok}:")
def ssm_c(e,c,F):
    s=cmac(P(U+2),P(L128),P(U))+cmac(P(U+4),P(L128),P(U+2))+cmac(P(U+6),P(L128),P(U+4))
    s+=combine(U+6,U,U+2,L512,L1024)+cmac(P(PP),P(LP),P(U+6))
    prev=P(PP)
    for r in range(8):
        n=(AS+r,AS+8+r); s+=cmac(n,P(LAM),prev); prev=n
    wa,ra,t=T+8,T+9,T+10
    s+=f"v_and_b32 v{wa}, 15, v{LANE}\nv_lshlrev_b32 v{wa}, 6, v{wa}\nv_and_or_b32 v{wa}, v{LANE}, 48, v{wa}\ns_add_u32 s3, s71, {SCR+4096}\nv_add_u32 v{wa}, s3, v{wa}\n"
    s+=f"v_lshrrev_b32 v{ra}, 5, v{LANE}\nv_bfe_u32 v{t}, v{LANE}, 2, 2\nv_lshl_add_u32 v{ra}, v{ra}, 3, v{t}\nv_lshlrev_b32 v{ra}, 6, v{ra}\nv_and_b32 v{t}, 1, v{LANE}\nv_lshl_add_u32 v{ra}, v{t}, 5, v{ra}\n"
    s+=f"v_and_or_b32 v{ra}, v{LANE}, 16, v{ra}\nv_and_b32 v{t}, 2, v{LANE}\nv_lshl_add_u32 v{ra}, v{t}, 2, v{ra}\ns_add_u32 s3, s71, {SCR+4096}\nv_add_u32 v{ra}, s3, v{ra}\n"
    for k in range(4): s+=f"v_cvt_pk_bf16_f32 v{T+k}, v{AS+2*k}, v{AS+2*k+1}\n"
    for k in range(4): s+=f"v_cvt_pk_bf16_f32 v{T+4+k}, -v{AS+8+2*k}, -v{AS+9+2*k}\n"
    F.text(e,s)
    for cp in range(2): F.add(lambda cp=cp: e.ds(f"ds_write_b128 v{wa}, v[{T+4*cp}:{T+4*cp+3}] offset:{1024*cp}","tw"))
    F.add(lambda: e.wait(lg="tw"))
    for cp in range(2):
        for h in range(2): F.add(lambda cp=cp,h=h: e.ds(f"ds_read_b64_tr_b16 v[{AS+4*cp+2*h}:{AS+4*cp+2*h+1}], v{ra} offset:{1024*cp+256*h}","tr"))
    F.add(lambda: e.wait(lg="tr"))
    for cp in range(2): F.add(lambda cp=cp: (e.i(f"s_add_u32 s74, s95, {cp*32*1024}"), e.vm(f"buffer_store_dwordx4 v[{AS+4*cp}:{AS+4*cp+3}], v{L16}, s[28:31], s74 offen {c.st}","hs")))
def gate(e,c):
    skip=e.label()
    e.i(f"s_cmp_lg_u32 s6, 14\ns_cbranch_scc1 {skip}\ns_cmp_lg_u32 s70, 0\ns_cbranch_scc1 {skip}")
    e.i(f"v_lshrrev_b32 v{DX}, 5, v{LANE}\nv_lshlrev_b32 v{DX}, 4, v{DX}")
    for b in range(4):
        for k in range(8): e.i(f"global_load_dwordx4 v[{FB+4*k}:{FB+4*k+3}], v{DX}, s[62:63] offset:{32*(8*b+k)}")
        e.i("s_waitcnt vmcnt(0)")
        for k in range(8):
            s=8*b+k; e.i(f"v_mfma_f32_32x32x16_bf16 v[{AF}:{AF+15}], v[{FB+4*k}:{FB+4*k+3}], v[{4*s}:{4*s+3}], "+("0" if s==0 else f"v[{AF}:{AF+15}]"))
    a=AF
    e.i(f"s_lshl_b32 s3, s5, 2\ns_add_u32 s3, s3, s7\ns_lshl_b32 s3, s3, 7\ns_add_u32 s3, s3, {G_OFF}\nv_and_b32 v{DX}, 31, v{LANE}\nv_lshlrev_b32 v{DX}, 2, v{DX}\ns_nop 15\ns_nop 3")
    e.i(f"v_cvt_pk_bf16_f32 v{a}, v{a}, v{a}\nv_lshlrev_b32 v{a}, 16, v{a}\nv_mul_f32 v{a}, {NLOG2E}, v{a}\nv_exp_f32 v{a}, v{a}\ns_nop 0\nv_add_f32 v{a}, 1.0, v{a}\nv_rcp_f32 v{a}, v{a}\ns_nop 0\nv_cvt_pk_bf16_f32 v{a}, v{a}, v{a}\nv_lshlrev_b32 v{a}, 16, v{a}")
    e.i(f"buffer_store_dword v{a}, v{DX}, s[28:31], s3 offen sc1\n{skip}:")
def phase1(e,c,tail):
    e.i("s_and_b32 s3, s2, 1\ns_lshl_b32 s3, s3, 3\ns_bfe_u32 s5, s2, 0x30003\ns_add_u32 s5, s5, s3")
    e.i("s_bfe_u32 s3, s2, 0x20001\ns_lshl_b32 s3, s3, 2\ns_lshr_b32 s6, s2, 6\ns_add_u32 s6, s6, s3")
    e.i("s_and_b32 s7, s4, 3\ns_lshr_b32 s70, s4, 2\ns_lshl_b32 s71, s4, 11\ns_lshl_b32 s72, s4, 10\ns_lshl_b32 s73, s70, 13\ns_lshl_b32 s3, s7, 10\ns_add_u32 s73, s73, s3")
    r8,p,t0,t1,t2=1,2,3,4,5
    e.i(f"v_lshrrev_b32 v{r8}, 3, v{LANE}\nv_and_b32 v{p}, 7, v{LANE}")
    for q in range(2):
        e.i(f"s_lshl_b32 s3, s4, 4\ns_add_u32 s3, s3, {8*q}\nv_add_u32 v{t0}, s3, v{r8}\nv_and_b32 v{t1}, 31, v{t0}")
        tau(e,DX+q,t1,t2)
        e.i(f"v_and_b32 v{t1}, 0x60, v{t0}\nv_add_u32 v{DX+q}, v{DX+q}, v{t1}\ns_lshl_b32 s3, s5, 7\nv_add_u32 v{DX+q}, s3, v{DX+q}\nv_bfe_u32 v{t0}, v{t0}, 1, 3\nv_xor_b32 v{t0}, v{t0}, v{p}\nv_lshlrev_b32 v{t0}, 4, v{t0}\nv_lshl_add_u32 v{DX+q}, v{DX+q}, 10, v{t0}")
    e.i(f"s_lshl_b32 s3, s4, 3\nv_add_u32 v{t0}, s3, v{r8}\nv_mul_u32_u24 v{t0}, 3584, v{t0}\ns_lshl_b32 s3, s6, 8\nv_add_u32 v{t0}, s3, v{t0}\nv_and_b32 v{t1}, 2, v{r8}\nv_xor_b32 v{t1}, v{t1}, v{p}")
    e.i(f"v_lshl_add_u32 v{DW}, v{t1}, 4, v{t0}\nv_xor_b32 v{t1}, 4, v{t1}\nv_lshl_add_u32 v{DW+1}, v{t1}, 4, v{t0}")
    e.i("s_waitcnt lgkmcnt(0)")
    srd(e,8,36,2048*1024); srd(e,12,56,512*3584); srd(e,16,58,512*3584); srd(e,28,68,WS_SIZE); srd(e,32,68,WS_SIZE)
    e.i(f"s_cmp_lt_u32 s6, 14\ns_cselect_b32 s14, s14, 0\ns_cselect_b32 s18, s18, 0\ns_cselect_b32 s34, s34, 0")
    srd(e,88,68,4096); e.i(f"s_lshl_b32 s3, s6, 12\ns_add_u32 s3, s3, {S_OFF}\ns_add_u32 s88, s88, s3\ns_addc_u32 s89, s89, 0")
    stamp(e,c,0,True); stamp(e,c,1)
    e.i(f"v_mov_b32 v{t1}, -1\ns_lshl_b32 s3, s5, 8\ns_cmp_eq_u32 s4, 0\ns_cselect_b32 s3, s3, 0x10000\nv_lshl_add_u32 v{t2}, v{LANE}, 2, s3")
    e.vm(f"buffer_store_dword v{t1}, v{t2}, s[88:91], 0 offen sc1","clr")
    for s in range(3):
        for f in p1_dmas(e,s): f()
    if c.merged: c.early(e)
    e.i(f"s_lshl_b32 s3, s6, 1\ns_add_u32 s3, s3, s70\ns_lshl_b32 s3, s3, 5\nv_and_b32 v{t0}, 15, v{LANE}\nv_lshl_add_u32 v{t0}, v{t0}, 1, s3")
    for k,pp in enumerate((38,40,50)): e.vm(f"global_load_ushort v{T+k}, v{t0}, s[{pp}:{pp+1}]","c")
    srd(e,20,42,512*1024); srd(e,24,44,512*1024)
    e.i(f"s_lshl_b32 s3, s7, 3\nv_add_u32 v{t0}, s3, v{r8}\nv_bfe_u32 v{t1}, v{t0}, 1, 3\nv_xor_b32 v{t1}, v{t1}, v{p}\ns_lshl_b32 s3, s6, 5\nv_add_u32 v{t0}, s3, v{t0}\nv_lshlrev_b32 v{t0}, 10, v{t0}\ns_lshl_b32 s3, s70, 8\nv_lshl_add_u32 v{t1}, v{t1}, 4, s3\nv_add_u32 v{DB}, v{t0}, v{t1}")
    e.i(f"v_and_b32 v{t0}, 31, v{LANE}\nv_lshrrev_b32 v{t1}, 5, v{LANE}\nv_bfe_u32 v{t2}, v{t0}, 1, 3\nv_xor_b32 v{t1}, v{t1}, v{t2}\ns_lshl_b32 s3, s7, 12\nv_lshl_add_u32 v{t0}, v{t0}, 7, s3\nv_lshl_add_u32 v{RA}, v{t1}, 4, v{t0}")
    for k in range(1,4): e.i(f"v_xor_b32 v{RA+k}, {32*k}, v{RA}")
    e.i(f"v_lshrrev_b32 v{t0}, 5, v{LANE}\nv_bfe_u32 v{t1}, v{LANE}, 2, 2\nv_lshl_add_u32 v{t0}, v{t0}, 3, v{t1}\nv_lshlrev_b32 v{t0}, 7, v{t0}\nv_and_b32 v{t1}, 3, v{LANE}\nv_lshl_add_u32 v{t0}, v{t1}, 3, v{t0}")
    e.i(f"v_bfe_u32 v{t1}, v{LANE}, 4, 1\nv_lshl_add_u32 v{t0}, v{t1}, 13, v{t0}\nv_bfe_u32 v{t1}, v{LANE}, 3, 2\ns_lshl_b32 s3, s70, 1\nv_xor_b32 v{t1}, s3, v{t1}\nv_lshl_add_u32 v{t0}, v{t1}, 5, v{t0}\nv_add_u32 v{RW}, 0x10000, v{t0}\nv_xor_b32 v{RW+1}, 32, v{RW}")
    e.i(f"s_lshl_b32 s3, s5, 2\ns_add_u32 s3, s3, s7\ns_mul_i32 s95, s3, {176*1024}\ns_lshl_b32 s3, s6, 13\ns_add_u32 s75, s95, s3\ns_lshl_b32 s3, s70, 11\ns_add_u32 s75, s75, s3")
    e.i(f"s_lshl_b32 s3, s6, 1\ns_add_u32 s3, s3, s70\ns_add_u32 s3, s3, 112\ns_lshl_b32 s3, s3, 10\ns_add_u32 s95, s95, s3")
    e.i(f"s_mov_b32 s76, 0xffff0000\ns_mov_b32 s77, 0xffff0000\ns_mov_b32 s78, 0\ns_mov_b32 s79, 0xffff\ns_mov_b32 s80, 0\ns_mov_b32 s81, 0xffff0000")
    for k in range(3): e.i(f"s_cmp_eq_u32 s7, {k+1}\ns_cselect_b64 s[{82+2*k}:{83+2*k}], -1, 0")
    e.i(f"v_and_b32 v{SA}, 15, v{LANE}\ns_lshl_b32 s3, s4, 7\ns_add_u32 s3, s3, {SCR}\nv_lshl_add_u32 v{SA}, v{SA}, 3, s3")
    groups=[]
    for s in range(14):
        sl=(s%4)*16384
        for gi in range(2 if s<8 else 4):
            b=FB+16*(len(groups)&1); rd=[]; mf=[]
            if s<8 or s>=10:
                for kk in range(2):
                    sp=2*gi+kk; ks=(4*s if s<8 else 8*(s-10))+sp
                    if s<8: rd.append(f"ds_read_b128 v[{4*ks}:{4*ks+3}], v{RA+sp} offset:{sl}")
                    for t in range(2):
                        f=b+8*kk+4*t
                        for h in range(2): rd.append(f"ds_read_b64_tr_b16 v[{f+2*h}:{f+2*h+1}], v{RW+t} offset:{sl+(16*sp+4*h)*128}")
                        a=AF+16*t; mf.append(f"v_mfma_f32_32x32x16_bf16 v[{a}:{a+15}], v[{f}:{f+3}], v[{4*ks}:{4*ks+3}], "+("0" if ks==0 else f"v[{a}:{a+15}]"))
            else:
                for kk in range(4):
                    ks=16*(s-8)+4*gi+kk; f=b+4*kk
                    rd.append(f"ds_read_b128 v[{f}:{f+3}], v{RA+kk} offset:{sl+gi*4096}")
                    mf.append(f"v_mfma_f32_32x32x16_bf16 v[{AS}:{AS+15}], v[{4*ks}:{4*ks+3}], v[{f}:{f+3}], "+("0" if ks==0 else f"v[{AS}:{AS+15}]"))
            groups.append((s,gi,rd,mf))
    F=Fill(); D=Fill(); n=len(groups)
    def sync(s):
        e.wait(vm=("d",s),lg="*"); e.i("s_barrier"); stamp(e,c,2+s)
        if s==0:
            sk=e.label(); e.i(f"s_cmp_lg_u32 s4, 0\ns_cbranch_scc1 {sk}\ns_lshl_b32 s3, s6, 2\nv_mov_b32 v1, s3\nv_mov_b32 v2, 1\ns_mov_b64 exec, 1\nglobal_atomic_add v1, v2, s[66:67] sc1\ns_mov_b64 exec, -1\n{sk}:")
            e.vmq=[x for x in e.vmq]
        if s==8:
            a,b2=T+8,T+9
            e.i(f"v_and_b32 v{a}, 15, v{LANE}\nv_lshrrev_b32 v{b2}, 5, v{LANE}\nv_lshrrev_b32 v{RA}, 1, v{a}\nv_xor_b32 v{b2}, v{b2}, v{RA}\ns_lshl_b32 s3, s70, 11\nv_lshl_add_u32 v{a}, v{a}, 7, s3\nv_lshl_add_u32 v{a}, v{b2}, 4, v{a}\nv_bfe_u32 v{b2}, v{LANE}, 4, 1\nv_lshl_add_u32 v{RA}, v{b2}, 16, v{a}")
            for k in range(1,4): e.i(f"v_xor_b32 v{RA+k}, {32*k}, v{RA}")
            e.i(f"v_mul_u32_u24 v{b2}, {65536-8192}, v{b2}\nv_subrev_u32 v{b2}, 0x10000, v{b2}\nv_add_u32 v{RW}, v{RW}, v{b2}\nv_add_u32 v{RW+1}, v{RW+1}, v{b2}")
        for f in (p1_dmas(e,s+3) if s+3<14 else (c.late(e,s) if c.merged else [])): D.add(f)
    def reads(g):
        for r in groups[g][2]: e.ds(r,("r",g))
    sync(0); reads(0); ssm_consts(e,F)
    zstate=None
    for g in range(n):
        s,gi,rd,mf=groups[g]
        nxt_first = g+1<n and groups[g+1][1]==0
        e.wait(lg=("r",g))
        if s==8 and gi==1: ffn_epi(e,c,F,0)
        if s==10 and gi==0:
            F.flush()
            e.i(f"s_lshl_b32 s3, s6, 2\nv_mov_b32 v{RA+3}, s3")
            zstate=e.state(); zD=list(D.q); e.i("s_cmp_ge_u32 s6, 14\ns_cbranch_scc1 Lzpath")
        if s==10 and gi==1: ssm_a(e,F)
        if s==11 and gi==0: ssm_b(e,F)
        if s==12 and gi==2: F.add(lambda: cnt_check(e)); F.add(lambda: poll_prep(e))
        if s==13 and gi==1: F.add(lambda: poll_issue(e))
        per={8:5,9:6,10:9,11:5}.get(s,4)
        for k,m in enumerate(mf):
            if k==(c.pre_bar if nxt_first else 0) and g+1<n:
                if nxt_first:
                    if groups[g+1][0]==11: F.flush()
                    D.flush(); sync(groups[g+1][0])
                reads(g+1)
            e.i(m)
            if D.q: D.run(1)
            else: F.run(per)
    F.flush(); D.flush(); stamp(e,c,16)
    e.i("s_nop 7\ns_nop 3")
    ffn_epi(e,c,F,1); F.flush(); stamp(e,c,17)
    poll_check(e); stamp(e,c,18)
    ssm_c(e,c,F); F.flush(); stamp(e,c,19)
    e.i("Lp1end:")
    body_state=e.state()
    tail(e)
    e.restore(zstate); e.i("Lzpath:\ns_nop 7\ns_nop 3")
    ssm_a(e,F); F.flush(); e.wait(vm="*",lg="*"); e.i("s_barrier")
    if c.merged:
        for s in (11,12,13):
            for f in c.late(e,s): f()
    ssm_b(e,F); F.flush(); gate(e,c); cnt_check(e); poll_prep(e); poll_issue(e); poll_check(e); ssm_c(e,c,F); F.flush()
    e.wait(vm="*",lg="*"); e.i("s_branch Lp1end")
```

```python
from gen1 import *
AC=0; HB=128; NH=6; BF=176; VW=192; VC=193; VH1=195; RT=196; RC=198; GV=202; WA=208
def kinfo(n):
    if n<14: return ("f",n%7,n//7)
    return ("s",(n-14)//4,(n-14)%4)
CB=[(8192,12288),(16384,0)]
def p2_setup(e,c):
    e.i("s_and_b32 s5, s2, 7\ns_lshl_b32 s5, s5, 2\ns_lshr_b32 s3, s2, 6\ns_add_u32 s5, s5, s3\ns_bfe_u32 s6, s2, 0x30003")
    e.i("s_mul_i32 s71, s4, 20480\ns_lshr_b32 s3, s4, 2\ns_mul_i32 s3, s3, 56\ns_and_b32 s7, s4, 3\ns_add_u32 s3, s3, s7\ns_lshl_b32 s72, s3, 14\ns_lshl_b32 s3, s3, 10")
    e.i(f"s_mul_i32 s75, s5, {2*176*1024}\ns_add_u32 s73, s75, s3\ns_and_b32 s7, s4, 1\ns_lshl_b32 s3, s7, 5\ns_add_u32 s3, s3, 112\ns_lshr_b32 s70, s4, 1\ns_lshl_b32 s96, s70, 2\ns_add_u32 s3, s3, s96\ns_lshl_b32 s3, s3, 10\ns_add_u32 s75, s75, s3\ns_lshl_b32 s70, s70, 7")
    srd(e,12,60,1792*1024); srd(e,16,46,512*1024); e.i("s_cmp_eq_u32 s7, 1\ns_cselect_b32 s16, s48, s46\ns_cselect_b32 s17, s49, s47")
    r8,p,t0,t1=T,T+1,T+2,T+3
    e.i(f"v_lshrrev_b32 v{r8}, 3, v{LANE}\nv_and_b32 v{p}, 7, v{LANE}\nv_and_b32 v{t0}, 2, v{r8}\nv_lshlrev_b32 v{t0}, 1, v{t0}\nv_xor_b32 v{t0}, v{t0}, v{p}\ns_lshl_b32 s3, s6, 7\nv_lshl_add_u32 v{t0}, v{t0}, 4, s3\nv_lshl_add_u32 v{VW}, v{r8}, 10, v{t0}")
    e.i(f"v_lshrrev_b32 v{t0}, 1, v{r8}\nv_xor_b32 v{t0}, v{t0}, v{p}\ns_lshl_b32 s3, s6, 16\nv_lshl_add_u32 v{t0}, v{t0}, 4, s3\nv_lshl_add_u32 v{VC}, v{r8}, 10, v{t0}\nv_xor_b32 v{VC+1}, 64, v{VC}\nv_add_u32 v{VH1}, {176*1024}, v{L16}")
def p2_setup2(e,c):
    t0,t1,t2=T+2,T+3,T+4
    e.i(f"v_lshrrev_b32 v{t0}, 5, v{LANE}\nv_bfe_u32 v{t1}, v{LANE}, 2, 2\nv_lshl_add_u32 v{t0}, v{t0}, 2, v{t1}\nv_lshl_add_u32 v{t0}, v{t0}, 7, s71\nv_bfe_u32 v{t1}, v{LANE}, 3, 1\nv_lshl_add_u32 v{t0}, v{t1}, 6, v{t0}")
    e.i(f"v_bfe_u32 v{t1}, v{LANE}, 4, 1\nv_lshl_add_u32 v{t0}, v{t1}, 5, v{t0}\nv_and_b32 v{t1}, 3, v{LANE}\nv_lshl_add_u32 v{RT}, v{t1}, 3, v{t0}\nv_xor_b32 v{RT+1}, 64, v{RT}")
    e.i(f"v_and_b32 v{t0}, 31, v{LANE}\nv_lshrrev_b32 v{t1}, 5, v{LANE}\nv_bfe_u32 v{t2}, v{t0}, 1, 3\nv_xor_b32 v{t2}, v{t1}, v{t2}\nv_lshl_add_u32 v{RC}, v{t0}, 7, s71\nv_lshl_add_u32 v{RC}, v{t2}, 4, v{RC}")
    e.i(f"v_and_b32 v{t2}, 7, v{LANE}\nv_xor_b32 v{t2}, v{t1}, v{t2}\nv_lshl_add_u32 v{WA}, v{t0}, 8, s71\nv_lshl_add_u32 v{WA}, v{t2}, 4, v{WA}")
    for k in range(1,4): e.i(f"v_xor_b32 v{RC+k}, {32*k}, v{RC}\nv_xor_b32 v{WA+k}, {32*k}, v{WA}")
def bdma_f(e,n):
    _,a,G=kinfo(n)
    return [lambda q=q: dma(e,71,(n%10)*2048+q*1024,VW,12,(8*a+4*G)*16384+q*8192,("b",n),72) for q in range(2)]
def bdma_s(e,b,nt):
    return [lambda q=q: dma(e,71,CB[b][nt]+(q&3)*1024,VC+(q&1),16,q*8192+b*512,("b",14+4*b),70) for q in range(4*nt,4*nt+4)]
def hload(e,c,n):
    k,a,b=kinfo(n); hb=HB+8*(n%NH)
    e.i(f"s_add_u32 s74, s73, {(8*a+4*b)*1024}" if k=="f" else f"s_add_u32 s74, s75, {(16*a+b)*1024}")
    for mt in range(2): e.vm(f"buffer_load_dwordx4 v[{hb+4*mt}:{hb+4*mt+3}], v{VH1 if mt else L16}, s[28:31], s74 offen {c.ld}",("h2",n))
def breads(e,n):
    k,a,b=kinfo(n); bf=BF+8*(n&1)
    for nt in range(2):
        if k=="f":
            for h in range(2): e.ds(f"ds_read_b64_tr_b16 v[{bf+4*nt+2*h}:{bf+4*nt+2*h+1}], v{RT+nt} offset:{(n%10)*2048+h*1024}",("br",n))
        else: e.ds(f"ds_read_b128 v[{bf+4*nt}:{bf+4*nt+3}], v{RC+b} offset:{CB[a][nt]}",("br",n))
def epi_loads(e,c):
    t0,t1,t2=T,T+1,T+2
    e.i(f"v_and_b32 v{t0}, 31, v{LANE}\nv_lshlrev_b32 v{t0}, 2, v{t0}\ns_lshl_b32 s3, s5, 8\ns_add_u32 s3, s3, {G_OFF}")
    for mt in range(2): e.vm(f"buffer_load_dword v{GV+mt}, v{t0}, s[28:31], s3 offen offset:{128*mt} sc1","g")
    e.i(f"s_lshl_b32 s96, s4, 2\nv_lshrrev_b32 v{t0}, 4, v{LANE}\nv_add_u32 v{t0}, s96, v{t0}\nv_lshlrev_b32 v{t1}, 2, v{t0}")
    for mt in range(2): e.vm(f"buffer_load_dword v{GV+2+mt}, v{t1}, s[28:31], s3 offen offset:{128*mt} sc1","g")
    tau(e,t1,t0,t2)
    e.i(f"s_lshl_b32 s3, s5, 6\nv_add_u32 v{t1}, s3, v{t1}\nv_and_b32 v{t2}, 15, v{LANE}\ns_lshl_b32 s3, s6, 4\nv_add_u32 v{T+3}, s3, v{t2}\nv_lshlrev_b32 v{T+3}, 3, v{T+3}\nv_lshl_add_u32 v{t1}, v{t1}, 10, v{T+3}")
    e.vm(f"global_load_dwordx2 v[{T+4}:{T+5}], v{T+3}, s[52:53]","g")
    e.vm(f"global_load_dwordx2 v[{T+6}:{T+7}], v{t1}, s[36:37]","g")
    e.i(f"v_add_u32 v{T+3}, 0x8000, v{t1}")
    e.vm(f"global_load_dwordx2 v[{T+8}:{T+9}], v{T+3}, s[36:37]","g")
    e.i(f"v_lshlrev_b32 v{GV+4}, 1, v{t1}\nv_and_b32 v{T+3}, 7, v{t0}\nv_xor_b32 v{t2}, v{t2}, v{T+3}\nv_lshlrev_b32 v{t2}, 4, v{t2}\nv_lshl_add_u32 v{GV+5}, v{t0}, 8, v{t2}")
def phase2(e,c,pre_b=0):
    if not pre_b:
        for n in range(10):
            for f in bdma_f(e,n): f()
            if n<NH: hload(e,c,n)
    p2_setup2(e,c)
    e.wait(vm=("b",0)); breads(e,0); stamp(e,c,32)
    for n in range(22):
        k,a,b=kinfo(n)
        if n+1<22: e.wait(vm=("b",n+1)); breads(e,n+1)
        e.wait(lg=("br",n),vm=("h2",n))
        q=[]
        if n<4: q=bdma_f(e,n+10)
        elif n==7: q=bdma_s(e,0,0)+bdma_s(e,0,1)
        elif n==9: q=bdma_s(e,1,0)
        elif n==11: q=bdma_s(e,1,1)
        bf=BF+8*(n&1); hb=HB+8*(n%NH)
        for nt in range(2):
            for mt in range(2):
                a0=AC+(0 if k=="f" else 64)+(2*nt+mt)*16
                e.i(f"v_mfma_f32_32x32x16_bf16 v[{a0}:{a0+15}], v[{bf+4*nt}:{bf+4*nt+3}], v[{hb+4*mt}:{hb+4*mt+3}], "+("0" if n in (0,14) else f"v[{a0}:{a0+15}]"))
                for _ in range((len(q)+3)//4 if (nt,mt)!=(1,1) else len(q)):
                    if q: q.pop(0)()
        if c.merged: c.p2hook(e,n)
        if n+NH<22: hload(e,c,n+NH)
        if n==16: epi_loads(e,c)
        if n in (6,13): stamp(e,c,33+n//7)
    stamp(e,c,35)
    e.wait(vm="g")
    for mt in range(2): e.i(f"v_sub_f32 v{T+mt}, 1.0, v{GV+mt}\nv_cvt_pk_bf16_f32 v{T+mt}, v{T+mt}, v{T+mt}\nv_lshlrev_b32 v{T+mt}, 16, v{T+mt}")
    for i in range(4):
        for r in range(16): e.i(f"v_mul_f32 v{AC+16*i+r}, v{T+(i&1)}, v{AC+16*i+r}")
    for i in range(4):
        nt,mt=i>>1,i&1
        for qq in range(4):
            for r in range(4): e.i(f"v_fmac_f32 v{AC+16*i+4*qq+r}, v{GV+mt}, v{AC+64+16*i+4*qq+r}")
            e.ds(f"ds_write_b128 v{WA+qq}, v[{AC+16*i+4*qq}:{AC+16*i+4*qq+3}] offset:{mt*8192+nt*128}","rw")
    for cc in range(2):
        xs=T+6+2*cc; o=HB+4*cc
        for k in range(2):
            e.i(f"v_lshlrev_b32 v{T}, 16, v{xs+k}\nv_lshlrev_b32 v{T+1}, 16, v{T+4+k}\nv_and_b32 v{T+2}, 0xffff0000, v{xs+k}\nv_and_b32 v{T+3}, 0xffff0000, v{T+4+k}\nv_mul_f32 v{T}, v{T}, v{T+1}\nv_mul_f32 v{T+2}, v{T+2}, v{T+3}\nv_cvt_pk_bf16_f32 v{T}, v{T}, v{T+2}")
            e.i(f"v_lshlrev_b32 v{o+2*k}, 16, v{T}\nv_and_b32 v{o+2*k+1}, 0xffff0000, v{T}\nv_mul_f32 v{o+2*k}, v{o+2*k}, v{GV+2+cc}\nv_mul_f32 v{o+2*k+1}, v{o+2*k+1}, v{GV+2+cc}")
    e.i(f"v_add_u32 v{T}, 61440, v{GV+5}\nv_add_u32 v{T+1}, 122880, v{GV+5}")
    e.wait(lg="*"); e.i("s_barrier"); stamp(e,c,36)
    for cc in range(2):
        for p in range(8):
            ad=[GV+5,T,T+1][p//3]; e.ds(f"ds_read_b128 v[{32*cc+4*p}:{32*cc+4*p+3}], v{ad} offset:{(p%3)*20480+cc*8192}",("rr",cc,p))
    srd(e,8,64,2048*2048)
    for cc in range(2):
        o=HB+4*cc
        for p in range(8):
            e.wait(lg=("rr",cc,p))
            for r in range(4): e.i(f"v_add_f32 v{o+r}, v{o+r}, v{32*cc+4*p+r}")
        e.i(f"s_mov_b32 s3, {cc*65536}")
        e.vm(f"buffer_store_dwordx4 v[{o}:{o+3}], v{GV+4}, s[8:11], s3 offen")
KN="gated_mix__ssm_conv_s5__glu_gated_swiglu__prompt"
def kdesc(n): return f'''.p2align 6
.amdhsa_kernel {n}
  .amdhsa_next_free_vgpr 256
  .amdhsa_next_free_sgpr 102
  .amdhsa_accum_offset 256
  .amdhsa_group_segment_fixed_size 0
  .amdhsa_kernarg_size 136
  .amdhsa_user_sgpr_count 2
  .amdhsa_user_sgpr_kernarg_segment_ptr 1
  .amdhsa_system_sgpr_workgroup_id_x 1
.end_amdhsa_kernel
'''
def khead(n): return f".globl {n}\n.p2align 8\n.type {n},@function\n{n}:\n"
def gen_two(c):
    c.ld=getattr(c,"ld","")
    e=E(); common_prologue(e,c)
    phase1(e,c,lambda e: (prof_end(e,c,0), e.i("Lexit:\ns_endpgm")))
    k1="\n".join(e.L)
    e=E(); e.nl=1000; common_prologue(e,c); e.i("s_waitcnt lgkmcnt(0)"); srd(e,28,68,WS_SIZE); stamp(e,c,0,True); stamp(e,c,1)
    p2_setup(e,c); phase2(e,c); prof_end(e,c,1); e.i("Lexit:\ns_endpgm")
    k2="\n".join(e.L).replace("Lexit","Lexit2")
    hdr=open("cdna_kernels/"+KN+".s.ref").read().split("; Override")[0]
    return hdr+f"; @launch kernel=p1_kernel grid=(256,1,1) block=(512,1,1) lds=163840\n; @launch kernel=p2_kernel grid=(256,1,1) block=(512,1,1) lds=163840\n"+'.amdgcn_target "amdgcn-amd-amdhsa--gfx950"\n.text\n'+khead("p1_kernel")+k1+"\n"+khead("p2_kernel")+k2+'\n.section .rodata,"a"\n'+kdesc("p1_kernel")+kdesc("p2_kernel")
if __name__=="__main__":
    import sys
    c=Cfg()
    for a in sys.argv[2:]:
        k,v=a.split("="); setattr(c,k,int(v) if v.lstrip("-").isdigit() else v)
    open(sys.argv[1],"w").write(gen_two(c))
```

```python
from emit import *
S_OFF=0xC20000; G_OFF=0xC10000; PROF=0xD00000; WS_SIZE=0xE00000
SCR=131072
LOG2E="0x3fb8aa3b"; NLOG2E="0xbfb8aa3b"
X=0; AF=128; AS=160; FB=176; RA=208; RW=212; DX=214; DW=216; DB=218; L16=219; LANE=220; SA=221
LAM=222; L8=224; L16P=226; L32=228; L128=230; L512=232; L1024=234; LQ=236; LP=238; CO=240; T=242; PV=255
class Cfg:
    prof=0; pre_bar=1; merged=0; st="sc1"; nodma=0; nofill=0; noread=0; nomfma=0; few=0; noatom=0; spread=4; rot=1; ibar=0; dist=3; pre=2
def stamp(e,c,idx,real=False):
    if not c.prof: return
    if c.few and idx not in (0,1,2,3,6,10,12,16,17,18,19,24,32,33,34,35,36,37,62,63): return
    e.i(f"{'s_memrealtime' if real else 's_memtime'} s[92:93]"); e.wait(lg="*"); e.i(f"v_writelane_b32 v{PV}, s92, {idx}")
def prof_end(e,c,kid):
    if not c.prof: return
    stamp(e,c,62); stamp(e,c,63,True)
    e.i(f"s_lshl_b32 s92, s2, 3\ns_add_u32 s92, s92, s4\ns_lshl_b32 s92, s92, 8\ns_add_u32 s92, s92, {PROF+kid*0x80000}")
    e.i(f"v_mbcnt_lo_u32_b32 v254, -1, 0\nv_mbcnt_hi_u32_b32 v254, -1, v254\nv_lshlrev_b32 v254, 2, v254")
    e.vm(f"buffer_store_dword v{PV}, v254, s[28:31], s92 offen")
def srd(e,d,p,n):
    e.i(f"s_mov_b32 s{d}, s{p}\ns_mov_b32 s{d+1}, s{p+1}\ns_mov_b32 s{d+2}, {n}\ns_mov_b32 s{d+3}, 0x20000")
def tau(e,d,s,t):
    e.i(f"v_and_b32 v{d}, 4, v{s}\nv_lshlrev_b32 v{d}, 2, v{d}\nv_and_or_b32 v{d}, v{s}, 3, v{d}\nv_lshrrev_b32 v{t}, 3, v{s}\nv_lshl_or_b32 v{d}, v{t}, 2, v{d}")
def cmac(d,a,b):
    return f"v_fmac_f32 v{d[0]}, v{a[0]}, v{b[0]}\nv_fmac_f32 v{d[1]}, v{a[0]}, v{b[1]}\nv_fma_f32 v{d[0]}, -v{a[1]}, v{b[1]}, v{d[0]}\nv_fmac_f32 v{d[1]}, v{a[1]}, v{b[0]}\n"
def P(x): return (x,x+1)
def csq(d,s,t): return f"v_mul_f32 v{t}, v{s+1}, v{s+1}\nv_mul_f32 v{t+1}, v{s}, v{s+1}\nv_fma_f32 v{d}, v{s}, v{s}, -v{t}\nv_add_f32 v{d+1}, v{t+1}, v{t+1}\n"
def cis(d,la,rev,t):
    return f"v_rndne_f32 v{t}, v{rev}\nv_exp_f32 v{t+1}, v{la}\nv_sub_f32 v{t}, v{rev}, v{t}\nv_cos_f32 v{d}, v{t}\nv_sin_f32 v{d+1}, v{t}\ns_nop 0\nv_mul_f32 v{d}, v{d}, v{t+1}\nv_mul_f32 v{d+1}, v{d+1}, v{t+1}\n"
def combine(ee,A,C,La,Lb):
    s=f"v_mov_b32 v{A}, v{ee}\nv_mov_b32 v{A+1}, v{ee+1}\ns_nop 1\nv_permlane16_swap_b32 v{A}, v{ee}\nv_permlane16_swap_b32 v{A+1}, v{ee+1}\ns_nop 0\n"
    s+=cmac(P(ee),P(La),P(A))
    s+=f"v_mov_b32 v{C}, v{ee}\nv_mov_b32 v{C+1}, v{ee+1}\ns_nop 1\nv_permlane32_swap_b32 v{C}, v{ee}\nv_permlane32_swap_b32 v{C+1}, v{ee+1}\ns_nop 0\n"
    s+=cmac(P(ee),P(Lb),P(C))
    return s
def common_prologue(e,c):
    e.i("s_cmp_ge_u32 s2, 256\ns_cbranch_scc1 Lexit")
    e.i("s_load_dwordx16 s[36:51], s[0:1], 0\ns_load_dwordx16 s[52:67], s[0:1], 64\ns_load_dwordx2 s[68:69], s[0:1], 128")
    e.i(f"v_lshrrev_b32 v1, 6, v0\nv_and_b32 v{LANE}, 63, v0\nv_readfirstlane_b32 s4, v1\nv_lshlrev_b32 v{L16}, 4, v{LANE}")
def dma(e,ldsb,ldso,voff,srdn,soff,tag,sbase=None):
    e.i(f"s_add_u32 m0, s{ldsb}, {ldso}")
    e.i(f"s_mov_b32 s74, {soff}" if sbase is None else f"s_add_u32 s74, s{sbase}, {soff}")
    e.vm(f"buffer_load_dwordx4 v{voff}, s[{srdn}:{srdn+3}], s74 offen lds",tag)
XS=[38,39,40,41,42,43,44,45]; WT=[50,51,54,55,56,57,58,59]
def dmas(e,ldsb,ldso,voff,srdn,sreg,tag,imm=0):
    e.i(f"s_add_u32 m0, s{ldsb}, {ldso-imm}\ns_nop 0")
    e.vm(f"buffer_load_dwordx4 v{voff}, s[{srdn}:{srdn+3}], s{sreg} offen "+(f"offset:{imm} " if imm else "")+"lds",tag)
def p1_dmas(e,s):
    sl=(s%4)*16384; tg=("d",s); L=[]
    if s<8:
        for q in range(2): L.append(lambda q=q: dmas(e,71,sl+q*1024,DX+q,8,XS[s],tg))
        for mt in range(2): L.append(lambda mt=mt: dmas(e,72,65536+sl+mt*8192,DW+mt,12+4*mt,WT[s],tg))
    elif s<10:
        for cp in range(2):
            for sc in range(2): L.append(lambda cp=cp,sc=sc: dmas(e,73,cp*65536+sl+sc*4096,DB,20+4*cp,98+2*(s-8)+sc,tg))
    elif s<14:
        for h in range(2):
            for mt in range(2): L.append(lambda h=h,mt=mt: dmas(e,72,mt*65536+sl+h*8192,DW+mt,12+4*mt,WT[2*(s-10)+h],tg))
    return L
def ffn_epi(e,c,F,G):
    for t in range(2):
        a=AF+16*t; R=range(8)
        F.text(e,"".join(f"v_mul_f32 v{a+8+r}, v{a+r}, v{a+8+r}\n" for r in R))
        for op in (f"v_mul_f32 v{{0}}, {NLOG2E}, v{{0}}","v_exp_f32 v{0}, v{0}","v_add_f32 v{0}, 1.0, v{0}","v_rcp_f32 v{0}, v{0}"):
            F.text(e,"".join(op.format(a+r)+"\n" for r in R))
        F.text(e,"".join(f"v_mul_f32 v{a+8+r}, v{a+r}, v{a+8+r}\n" for r in R))
        F.text(e,"".join(f"v_cvt_pk_bf16_f32 v{a+k}, v{a+8+2*k}, v{a+9+2*k}\n" for k in range(4)))
        F.add(lambda t=t,a=a: (e.i(f"s_add_u32 s74, s75, {(4*G+t)*1024}"), e.vm(f"buffer_store_dwordx4 v[{a}:{a+3}], v{L16}, s[32:35], s74 offen {c.st}",("h",G))))
def ssm_consts(e,F):
    lr,li,ld=T,T+1,T+2; t=T+4
    F.add(lambda: e.wait(vm="c"))
    s=f"v_lshlrev_b32 v{lr}, 16, v{lr}\nv_lshlrev_b32 v{li}, 16, v{li}\nv_lshlrev_b32 v{ld}, 16, v{ld}\nv_mul_f32 v{ld}, {LOG2E}, v{ld}\nv_exp_f32 v{ld}, v{ld}\ns_nop 0\nv_cvt_pk_bf16_f32 v{ld}, v{ld}, v{ld}\nv_lshlrev_b32 v{ld}, 16, v{ld}\n"
    la,rev=T+6,T+7
    s+=f"v_mul_f32 v{la}, v{ld}, v{lr}\nv_mul_f32 v{rev}, v{ld}, v{li}\nv_mul_f32 v{la}, {LOG2E}, v{la}\nv_mul_f32 v{rev}, 0.15915494, v{rev}\n"
    s+=cis(LAM,la,rev,t)
    s+=f"v_mul_f32 v{t}, v{lr}, v{lr}\nv_fmac_f32 v{t}, v{li}, v{li}\nv_rcp_f32 v{t}, v{t}\nv_add_f32 v{t+1}, -1.0, v{LAM}\nv_add_f32 v{t}, v{t}, v{t}\n"
    s+=f"v_mul_f32 v{CO}, v{t+1}, v{lr}\nv_mul_f32 v{CO+1}, v{LAM+1}, v{lr}\nv_fmac_f32 v{CO}, v{LAM+1}, v{li}\nv_fma_f32 v{CO+1}, -v{t+1}, v{li}, v{CO+1}\nv_mul_f32 v{CO}, v{CO}, v{t}\nv_mul_f32 v{CO+1}, v{CO+1}, v{t}\n"
    n=T+3
    s+=f"v_lshrrev_b32 v{n}, 4, v{LANE}\nv_lshlrev_b32 v{n}, 3, v{n}\nv_cvt_f32_u32 v{n}, v{n}\nv_mul_f32 v{lr}, v{la}, v{n}\nv_mul_f32 v{li}, v{rev}, v{n}\n"+cis(LQ,lr,li,t)
    s+=f"s_lshl_b32 s3, s7, 5\nv_cvt_f32_u32 v{ld}, s3\nv_add_f32 v{n}, v{n}, v{ld}\nv_mul_f32 v{lr}, v{la}, v{n}\nv_mul_f32 v{li}, v{rev}, v{n}\n"+cis(LP,lr,li,t)
    s+=csq(L8,LAM,t)+csq(L8,L8,t)+csq(L8,L8,t)+csq(L16P,L8,t)+csq(L32,L16P,t)+csq(L128,L32,t)+csq(L128,L128,t)+csq(L512,L128,t)+csq(L512,L512,t)+csq(L1024,L512,t)
    F.text(e,s)
PP=RA
def ssm_a(e,F):
    s="".join(f"v_permlane16_swap_b32 v{AS+r}, v{AS+8+r}\n" for r in range(8))
    for r in range(8):
        zr,zi=AS+r,AS+8+r; t=T+2*(r&1)
        s+=f"v_mul_f32 v{t}, v{CO+1}, v{zi}\nv_mul_f32 v{t+1}, v{CO+1}, v{zr}\nv_fma_f32 v{zr}, v{CO}, v{zr}, -v{t}\nv_fma_f32 v{zi}, v{CO}, v{zi}, v{t+1}\n"
    prev=(AS,AS+8)
    for r in range(1,8):
        n=P(T+2*(r&1))
        s+=f"v_fma_f32 v{n[0]}, v{LAM}, v{prev[0]}, v{AS+r}\nv_fma_f32 v{n[1]}, v{LAM}, v{prev[1]}, v{AS+8+r}\nv_fma_f32 v{n[0]}, -v{LAM+1}, v{prev[1]}, v{n[0]}\nv_fmac_f32 v{n[1]}, v{LAM+1}, v{prev[0]}\n"
        prev=n
    ee=T+2; A=T+4; C=T+6
    s+=combine(ee,A,C,L8,L16P)
    F.text(e,s)
    F.add(lambda: e.ds(f"ds_write_b64 v{SA}, v[{ee}:{ee+1}]","sw"))
    s=f"v_cndmask_b32 v{A}, 0, v{A}, s[76:77]\nv_cndmask_b32 v{A+1}, 0, v{A+1}, s[76:77]\nv_cndmask_b32 v{PP}, v{A}, v{C}, s[78:79]\nv_cndmask_b32 v{PP+1}, v{A+1}, v{C+1}, s[78:79]\n"
    s+=cmac(P(A),P(L8),P(C))+f"v_cndmask_b32 v{PP}, v{PP}, v{A}, s[80:81]\nv_cndmask_b32 v{PP+1}, v{PP+1}, v{A+1}, s[80:81]\n"
    F.text(e,s)
def ssm_b(e,F):
    W=T; R=T+8; ad=T+10
    F.text(e,f"s_lshl_b32 s3, s7, 7\nv_subrev_u32 v{ad}, s3, v{SA}")
    for k in range(4): F.add(lambda k=k: e.ds(f"ds_read_b64 v[{W+2*k}:{W+2*k+1}], v{ad} offset:{128*k}","sr"))
    F.add(lambda: e.wait(lg="sr"))
    s=cmac(P(W+2),P(L32),P(W))+cmac(P(W+4),P(L32),P(W+2))+cmac(P(W+6),P(L32),P(W+4))
    for k in range(2): s+=f"v_cmp_eq_u32 vcc, -1, v{W+6+k}\nv_mov_b32 v{ad}, 0x7fc00000\ns_nop 0\nv_cndmask_b32 v{W+6+k}, v{W+6+k}, v{ad}, vcc\n"
    s+=f"v_and_b32 v{ad}, 15, v{LANE}\nv_lshlrev_b32 v{ad}, 3, v{ad}\ns_lshl_b32 s3, s5, 8\ns_lshl_b32 s74, s70, 7\ns_add_u32 s3, s3, s74\n"
    s+=f"s_cmp_eq_u32 s7, 0\ns_cselect_b32 s3, s3, 0x10000\nv_add_u32 v{ad}, s3, v{ad}\n"
    F.text(e,s)
    F.add(lambda: cnt_check(e))
    F.add(lambda: (e.i("s_mov_b64 exec, 0xffff"), e.vm(f"buffer_store_dwordx2 v[{W+6}:{W+7}], v{ad}, s[88:91], 0 offen sc1","pub"), e.i("s_mov_b64 exec, -1")))
    s=""
    for k in range(2):
        s+=f"v_cndmask_b32 v{R+k}, 0, v{W+k}, s[82:83]\nv_cndmask_b32 v{R+k}, v{R+k}, v{W+2+k}, s[84:85]\nv_cndmask_b32 v{R+k}, v{R+k}, v{W+4+k}, s[86:87]\n"
    F.text(e,s+cmac(P(PP),P(LQ),P(R)))
def spin(e,reg,load,cmp,mask):
    ok=e.label(); lp=e.label()
    e.i(f"s_mov_b32 s94, 0\n{lp}:\n{cmp}\ns_add_u32 s94, s94, 1\ns_nop 2\ns_and_b32 s3, vcc_lo, {mask}\ns_cbranch_scc0 {ok}\ns_cmp_ge_u32 s94, 0x8000\ns_cbranch_scc1 {ok}\ns_sleep 2")
    e.i(f"{load}\ns_waitcnt vmcnt(0)\ns_branch {lp}\n{ok}:")
CNT=DX
def cnt_load(): return f"global_load_dword v{CNT}, v{CNT+1}, s[66:67] sc1"
def cnt_issue(e): e.i(f"v_and_b32 v{CNT+1}, 15, v{LANE}\nv_lshlrev_b32 v{CNT+1}, 2, v{CNT+1}"); e.vm(cnt_load(),"cnt")
def cnt_check(e): e.wait(vm="cnt"); spin(e,CNT,cnt_load(),f"v_cmp_eq_u32 vcc, 0, v{CNT}","0xffff")
def flag_store(e,val,sm,sj):
    sk=e.label(); e.i(f"s_cmp_lg_u32 s4, 0\ns_cbranch_scc1 {sk}\ns_lshl_b32 s3, s{sm}, 11\ns_add_u32 s3, s3, s{sj}\ns_lshl_b32 s3, s3, 2\ns_add_u32 s3, s3, {S_OFF+4096}\nv_mov_b32 v{T+12}, {val}\ns_mov_b64 exec, 1\nbuffer_store_dword v{T+12}, off, s[28:31], s3 sc1\ns_mov_b64 exec, -1\n{sk}:")
U=T; UB=RA+3
def poll_issue(e,track=True):
    for k in range(4):
        e.i(f"v_add_u32 v{U+2*k}, {256*k}, v{UB}")
    for k in range(4):
        t=f"buffer_load_dwordx2 v[{U+2*k}:{U+2*k+1}], v{U+2*k}, s[88:91], 0 offen sc1"
        e.vm(t,"poll") if track else e.i(t)
def poll_prep(e):
    e.i(f"v_lshrrev_b32 v{UB}, 4, v{LANE}\nv_lshlrev_b32 v{UB}, 10, v{UB}\nv_and_b32 v{U}, 15, v{LANE}\nv_lshl_add_u32 v{UB}, v{U}, 3, v{UB}")
    e.i(f"s_sub_u32 s3, s5, 16\ns_lshl_b32 s3, s3, 8\ns_lshl_b32 s74, s70, 7\ns_add_u32 s3, s3, s74\nv_add_u32 v{UB}, s3, v{UB}")
def poll_check(e):
    e.wait(vm="poll"); ok=e.label(); lp=e.label(); t=T+8
    e.i(f"s_mov_b32 s94, 0\n{lp}:\nv_max3_u32 v{t}, v{U}, v{U+1}, v{U+2}\nv_max3_u32 v{t}, v{t}, v{U+3}, v{U+4}\nv_max3_u32 v{t}, v{t}, v{U+5}, v{U+6}\nv_max_u32 v{t}, v{t}, v{U+7}")
    e.i(f"v_cmp_eq_u32 vcc, -1, v{t}\ns_add_u32 s94, s94, 1\ns_nop 3\ns_cbranch_vccz {ok}\ns_cmp_ge_u32 s94, 0x8000\ns_cbranch_scc1 {ok}\ns_sleep 1")
    poll_issue(e,False); e.i(f"s_waitcnt vmcnt(0)\ns_branch {lp}\n{ok}:")
def ssm_c(e,c,F):
    s=cmac(P(U+2),P(L128),P(U))+cmac(P(U+4),P(L128),P(U+2))+cmac(P(U+6),P(L128),P(U+4))
    s+=combine(U+6,U,U+2,L512,L1024)+cmac(P(PP),P(LP),P(U+6))
    prev=P(PP)
    for r in range(8):
        n=(AS+r,AS+8+r); s+=cmac(n,P(LAM),prev); prev=n
    wa,ra,t=T+8,T+9,T+10
    s+=f"v_and_b32 v{wa}, 15, v{LANE}\nv_lshlrev_b32 v{wa}, 6, v{wa}\nv_and_or_b32 v{wa}, v{LANE}, 48, v{wa}\ns_add_u32 s3, s71, {SCR}\nv_add_u32 v{wa}, s3, v{wa}\n"
    s+=f"v_lshrrev_b32 v{ra}, 5, v{LANE}\nv_bfe_u32 v{t}, v{LANE}, 2, 2\nv_lshl_add_u32 v{ra}, v{ra}, 3, v{t}\nv_lshlrev_b32 v{ra}, 6, v{ra}\nv_and_b32 v{t}, 1, v{LANE}\nv_lshl_add_u32 v{ra}, v{t}, 5, v{ra}\n"
    s+=f"v_and_or_b32 v{ra}, v{LANE}, 16, v{ra}\nv_and_b32 v{t}, 2, v{LANE}\nv_lshl_add_u32 v{ra}, v{t}, 2, v{ra}\ns_add_u32 s3, s71, {SCR}\nv_add_u32 v{ra}, s3, v{ra}\n"
    for k in range(4): s+=f"v_cvt_pk_bf16_f32 v{T+k}, v{AS+2*k}, v{AS+2*k+1}\n"
    for k in range(4): s+=f"v_cvt_pk_bf16_f32 v{T+4+k}, -v{AS+8+2*k}, -v{AS+9+2*k}\n"
    F.text(e,s)
    for cp in range(2): F.add(lambda cp=cp: e.ds(f"ds_write_b128 v{wa}, v[{T+4*cp}:{T+4*cp+3}] offset:{1024*cp}","tw"))
    F.add(lambda: e.wait(lg="tw"))
    for cp in range(2):
        for h in range(2): F.add(lambda cp=cp,h=h: e.ds(f"ds_read_b64_tr_b16 v[{AS+4*cp+2*h}:{AS+4*cp+2*h+1}], v{ra} offset:{1024*cp+256*h}","tr"))
    F.add(lambda: e.wait(lg="tr"))
    for cp in range(2): F.add(lambda cp=cp: (e.i(f"s_add_u32 s74, s95, {cp*32*1024}"), e.vm(f"buffer_store_dwordx4 v[{AS+4*cp}:{AS+4*cp+3}], v{L16}, s[28:31], s74 offen {c.st}","hs")))
def gate(e,c):
    skip=e.label()
    e.i(f"s_cmp_lg_u32 s6, 14\ns_cbranch_scc1 {skip}\ns_cmp_lg_u32 s70, 0\ns_cbranch_scc1 {skip}")
    e.i(f"v_lshrrev_b32 v{DW}, 5, v{LANE}\nv_lshlrev_b32 v{DW}, 4, v{DW}")
    for b in range(4):
        for k in range(8):
            if k%4==0: e.i(f"v_add_u32 v{DW+1}, s{XS[2*b+k//4]}, v{DW}")
            e.i(f"global_load_dwordx4 v[{FB+4*k}:{FB+4*k+3}], v{DW+1}, s[62:63] offset:{32*(k%4)}")
        e.i("s_waitcnt vmcnt(0)")
        for k in range(8):
            s=8*b+k; e.i(f"v_mfma_f32_32x32x16_bf16 v[{AF}:{AF+15}], v[{FB+4*k}:{FB+4*k+3}], v[{4*s}:{4*s+3}], "+("0" if s==0 else f"v[{AF}:{AF+15}]"))
    a=AF
    e.i(f"s_lshl_b32 s3, s5, 2\ns_add_u32 s3, s3, s7\ns_lshl_b32 s3, s3, 7\ns_add_u32 s3, s3, {G_OFF}\nv_and_b32 v{DW}, 31, v{LANE}\nv_lshlrev_b32 v{DW}, 2, v{DW}\ns_nop 15\ns_nop 3")
    e.i(f"v_cvt_pk_bf16_f32 v{a}, v{a}, v{a}\nv_lshlrev_b32 v{a}, 16, v{a}\nv_mul_f32 v{a}, {NLOG2E}, v{a}\nv_exp_f32 v{a}, v{a}\ns_nop 0\nv_add_f32 v{a}, 1.0, v{a}\nv_rcp_f32 v{a}, v{a}\ns_nop 0\nv_cvt_pk_bf16_f32 v{a}, v{a}, v{a}\nv_lshlrev_b32 v{a}, 16, v{a}")
    e.i(f"buffer_store_dword v{a}, v{DW}, s[28:31], s3 offen sc1\n{skip}:")
def phase1(e,c,tail):
    e.i("s_and_b32 s3, s2, 1\ns_lshl_b32 s3, s3, 3\ns_bfe_u32 s5, s2, 0x30003\ns_add_u32 s5, s5, s3")
    e.i("s_bfe_u32 s3, s2, 0x20001\ns_lshl_b32 s3, s3, 2\ns_lshr_b32 s6, s2, 6\ns_add_u32 s6, s6, s3")
    e.i("s_and_b32 s7, s4, 3\ns_lshr_b32 s70, s4, 2\ns_lshl_b32 s71, s4, 11\ns_lshl_b32 s72, s4, 10\ns_lshl_b32 s73, s70, 13\ns_lshl_b32 s3, s7, 10\ns_add_u32 s73, s73, s3")
    r8,p,t0,t1,t2=1,2,3,4,5
    e.i(f"v_lshrrev_b32 v{r8}, 3, v{LANE}\nv_and_b32 v{p}, 7, v{LANE}")
    for q in range(2):
        e.i(f"s_lshl_b32 s3, s4, 4\ns_add_u32 s3, s3, {8*q}\nv_add_u32 v{t0}, s3, v{r8}\nv_and_b32 v{t1}, 31, v{t0}")
        tau(e,DX+q,t1,t2)
        e.i(f"v_and_b32 v{t1}, 0x60, v{t0}\nv_add_u32 v{DX+q}, v{DX+q}, v{t1}\ns_lshl_b32 s3, s5, 7\nv_add_u32 v{DX+q}, s3, v{DX+q}\nv_bfe_u32 v{t0}, v{t0}, 1, 3\nv_xor_b32 v{t0}, v{t0}, v{p}\nv_lshlrev_b32 v{t0}, 4, v{t0}\nv_lshl_add_u32 v{DX+q}, v{DX+q}, 10, v{t0}")
    e.i(f"s_lshl_b32 s3, s4, 3\nv_add_u32 v{t0}, s3, v{r8}\nv_mul_u32_u24 v{t0}, 3584, v{t0}\ns_lshl_b32 s3, s6, 8\nv_add_u32 v{t0}, s3, v{t0}\nv_and_b32 v{t1}, 2, v{r8}\nv_xor_b32 v{t1}, v{t1}, v{p}")
    e.i(f"v_lshl_add_u32 v{DW}, v{t1}, 4, v{t0}\nv_xor_b32 v{t1}, 4, v{t1}\nv_lshl_add_u32 v{DW+1}, v{t1}, 4, v{t0}")
    e.i("s_waitcnt lgkmcnt(0)")
    srd(e,8,36,2048*1024); srd(e,12,56,512*3584); srd(e,16,58,512*3584); srd(e,28,68,WS_SIZE); srd(e,32,68,WS_SIZE)
    e.i(f"s_cmp_lt_u32 s6, 14\ns_cselect_b32 s14, s14, 0\ns_cselect_b32 s18, s18, 0\ns_cselect_b32 s34, s34, 0")
    srd(e,88,68,4096); e.i(f"s_lshl_b32 s3, s6, 13\ns_add_u32 s3, s3, {S_OFF}\ns_add_u32 s88, s88, s3\ns_addc_u32 s89, s89, 0")
    stamp(e,c,0,True); stamp(e,c,1)
    e.i(f"s_lshl_b32 s3, s6, 1\ns_add_u32 s3, s3, s70\ns_lshl_b32 s3, s3, 5\nv_and_b32 v{t0}, 15, v{LANE}\nv_lshl_add_u32 v{t0}, v{t0}, 1, s3")
    for k,pp in enumerate((38,40,50)): e.vm(f"global_load_ushort v{T+k}, v{t0}, s[{pp}:{pp+1}]","c")
    srd(e,20,42,512*1024); srd(e,24,44,512*1024)
    e.i("s_lshl_b32 s97, s6, 1\ns_add_u32 s97, s97, s5" if c.rot else "s_mov_b32 s97, 0")
    for k in range(8): e.i(f"s_add_u32 s3, s97, {k}\ns_and_b32 s3, s3, 7\ns_lshl_b32 s{XS[k]}, s3, 7\ns_mul_i32 s{WT[k]}, s3, {64*3584}")
    for k in range(4): e.i(f"s_cmp_eq_u32 s70, 0\ns_cselect_b32 s{98+k}, s{XS[4*(k>>1)+(k&1)]}, s{XS[4*(k>>1)+2+(k&1)]}")
    stamp(e,c,20)
    for s in range(c.pre):
        for f in p1_dmas(e,s): f()
        if s==0:
            sk=e.label()
            e.i(f"s_cmp_lg_u32 s6, 15\ns_cbranch_scc1 {sk}\ns_cmp_ge_u32 s4, 5\ns_cbranch_scc1 {sk}\ns_lshl_b32 s3, s5, 13\ns_add_u32 s3, s3, s72\ns_add_u32 s3, s3, {S_OFF}")
            e.i(f"v_mov_b32 v8, -1\nv_mov_b32 v9, -1\nv_mov_b32 v10, -1\nv_mov_b32 v11, -1\nbuffer_store_dwordx4 v[8:11], v{L16}, s[28:31], s3 offen sc1\ns_waitcnt vmcnt(0)\n{sk}:")
        if c.ibar and s<c.pre-1: e.i("s_barrier")
        stamp(e,c,21+s)
    e.i(f"s_lshl_b32 s3, s7, 3\nv_add_u32 v{t0}, s3, v{r8}\nv_bfe_u32 v{t1}, v{t0}, 1, 3\nv_xor_b32 v{t1}, v{t1}, v{p}\ns_lshl_b32 s3, s6, 5\nv_add_u32 v{t0}, s3, v{t0}\nv_lshlrev_b32 v{t0}, 10, v{t0}\nv_lshl_add_u32 v{DB}, v{t1}, 4, v{t0}")
    e.i(f"v_and_b32 v{t0}, 31, v{LANE}\nv_lshrrev_b32 v{t1}, 5, v{LANE}\nv_bfe_u32 v{t2}, v{t0}, 1, 3\nv_xor_b32 v{t1}, v{t1}, v{t2}\ns_lshl_b32 s3, s7, 12\nv_lshl_add_u32 v{t0}, v{t0}, 7, s3\nv_lshl_add_u32 v{RA}, v{t1}, 4, v{t0}")
    for k in range(1,4): e.i(f"v_xor_b32 v{RA+k}, {32*k}, v{RA}")
    e.i(f"v_lshrrev_b32 v{t0}, 5, v{LANE}\nv_bfe_u32 v{t1}, v{LANE}, 2, 2\nv_lshl_add_u32 v{t0}, v{t0}, 3, v{t1}\nv_lshlrev_b32 v{t0}, 7, v{t0}\nv_and_b32 v{t1}, 3, v{LANE}\nv_lshl_add_u32 v{t0}, v{t1}, 3, v{t0}")
    e.i(f"v_bfe_u32 v{t1}, v{LANE}, 4, 1\nv_lshl_add_u32 v{t0}, v{t1}, 13, v{t0}\nv_bfe_u32 v{t1}, v{LANE}, 3, 2\ns_lshl_b32 s3, s70, 1\nv_xor_b32 v{t1}, s3, v{t1}\nv_lshl_add_u32 v{t0}, v{t1}, 5, v{t0}\nv_add_u32 v{RW}, 0x10000, v{t0}\nv_xor_b32 v{RW+1}, 32, v{RW}")
    e.i(f"s_lshl_b32 s3, s5, 2\ns_add_u32 s3, s3, s7\ns_mul_i32 s95, s3, {176*1024}\ns_lshl_b32 s3, s6, 13\ns_add_u32 s75, s95, s3\ns_lshl_b32 s3, s70, 11\ns_add_u32 s75, s75, s3")
    e.i(f"s_lshl_b32 s3, s6, 1\ns_add_u32 s3, s3, s70\ns_add_u32 s3, s3, 112\ns_lshl_b32 s3, s3, 10\ns_add_u32 s95, s95, s3")
    e.i(f"s_mov_b32 s76, 0xffff0000\ns_mov_b32 s77, 0xffff0000\ns_mov_b32 s78, 0\ns_mov_b32 s79, 0xffff\ns_mov_b32 s80, 0\ns_mov_b32 s81, 0xffff0000")
    for k in range(3): e.i(f"s_cmp_eq_u32 s7, {k+1}\ns_cselect_b64 s[{82+2*k}:{83+2*k}], -1, 0")
    e.i(f"v_and_b32 v{SA}, 15, v{LANE}\ns_lshl_b32 s3, s4, 7\ns_add_u32 s3, s3, {SCR+16384}\nv_lshl_add_u32 v{SA}, v{SA}, 3, s3")
    groups=[]
    for s in range(14):
        sl=(s%4)*16384
        for gi in range(2 if s<8 else 4):
            b=FB+16*(len(groups)&1); rd=[]; mf=[]
            if s<8 or s>=10:
                for kk in range(2):
                    sp=2*gi+kk; ks=(4*s if s<8 else 8*(s-10))+sp
                    if s<8: rd.append(f"ds_read_b128 v[{4*ks}:{4*ks+3}], v{RA+sp} offset:{sl}")
                    for t in range(2):
                        f=b+8*kk+4*t
                        for h in range(2): rd.append(f"ds_read_b64_tr_b16 v[{f+2*h}:{f+2*h+1}], v{RW+t} offset:{sl+(16*sp+4*h)*128}")
                        a=AF+16*t; mf.append(f"v_mfma_f32_32x32x16_bf16 v[{a}:{a+15}], v[{f}:{f+3}], v[{4*ks}:{4*ks+3}], "+("0" if ks==0 else f"v[{a}:{a+15}]"))
            else:
                for kk in range(4):
                    ks=16*(s-8)+4*gi+kk; f=b+4*kk
                    rd.append(f"ds_read_b128 v[{f}:{f+3}], v{RA+kk} offset:{sl+gi*4096}")
                    mf.append(f"v_mfma_f32_32x32x16_bf16 v[{AS}:{AS+15}], v[{4*ks}:{4*ks+3}], v[{f}:{f+3}], "+("0" if ks==0 else f"v[{AS}:{AS+15}]"))
            groups.append((s,gi,rd,mf))
    F=Fill(); D=Fill(); RQ=Fill(); n=len(groups)
    def sync(s):
        if s==12: e.wait(vm=("h",0))
        e.wait(vm=("d",s),lg="*"); e.i("s_barrier"); stamp(e,c,2+s)
        if s==0:
            sk=e.label(); e.i(f"s_cmp_lg_u32 s6, 15\ns_cbranch_scc1 {sk}\ns_cmp_lg_u32 s4, 0\ns_cbranch_scc1 {sk}\ns_lshl_b32 s3, s5, 2\nv_mov_b32 v1, s3\nv_mov_b32 v2, 1\ns_mov_b64 exec, 1\nglobal_store_dword v1, v2, s[66:67] sc1\ns_mov_b64 exec, -1\n{sk}:")
        if s==12 and c.merged: flag_store(e,1,5,6)
        if s==8-c.dist: D.flush(); e.i(f"v_add_u32 v{DW}, 128, v{DW}\nv_add_u32 v{DW+1}, 128, v{DW+1}")
        if s==8:
            a,b2=T+8,T+9
            e.i(f"v_and_b32 v{a}, 15, v{LANE}\nv_lshrrev_b32 v{b2}, 5, v{LANE}\nv_lshrrev_b32 v{RA}, 1, v{a}\nv_xor_b32 v{b2}, v{b2}, v{RA}\ns_lshl_b32 s3, s70, 11\nv_lshl_add_u32 v{a}, v{a}, 7, s3\nv_lshl_add_u32 v{a}, v{b2}, 4, v{a}\nv_bfe_u32 v{b2}, v{LANE}, 4, 1\nv_lshl_add_u32 v{RA}, v{b2}, 16, v{a}")
            for k in range(1,4): e.i(f"v_xor_b32 v{RA+k}, {32*k}, v{RA}")
            e.i(f"v_mul_u32_u24 v{b2}, {65536-8192}, v{b2}\nv_subrev_u32 v{b2}, 0x10000, v{b2}\nv_add_u32 v{RW}, v{RW}, v{b2}\nv_add_u32 v{RW+1}, v{RW+1}, v{b2}")
        for s2 in ([s+c.dist] if s else range(c.pre,c.dist+1)):
            for f in ([] if c.nodma or s2>13 else p1_dmas(e,s2)): D.add(f)
        if c.merged and s>=11:
            for f in c.late(e,s): D.add(f)
    def reads(g):
        for r in groups[g][2]:
            if c.noread and g>1: continue
            if c.spread: RQ.add(lambda r=r: e.ds(r,("r",g)))
            else: e.ds(r,("r",g))
    sync(0); reads(0); RQ.flush(); ssm_consts(e,F)
    zstate=None
    for g in range(n):
        s,gi,rd,mf=groups[g]
        nxt_first = g+1<n and groups[g+1][1]==0
        e.wait(lg=("r",g))
        if s==8 and gi==1: ffn_epi(e,c,F,0)
        if s==10 and gi==0:
            F.flush()
            cnt_issue(e)
            zstate=e.state(); zD=list(D.q); e.i("s_cmp_ge_u32 s6, 14\ns_cbranch_scc1 Lzpath")
        if s==10 and gi==1: ssm_a(e,F)
        if s==11 and gi==0: ssm_b(e,F)
        if s==12 and gi==2: F.add(lambda: poll_prep(e))
        if s==10 and gi==0 and c.merged: c.setup_early(e)
        if s==13 and gi==0 and c.merged: F.add(lambda: c.fl_issue(e))
        if s==13 and gi==1: F.add(lambda: poll_issue(e))
        per={8:5,9:6,10:9,11:5}.get(s,4)
        for k,m in enumerate(mf):
            if k==(c.pre_bar if nxt_first else 0) and g+1<n:
                if nxt_first:
                    if groups[g+1][0] in (11,12): F.flush()
                    D.flush(); sync(groups[g+1][0])
                reads(g+1)
            if not c.nomfma: e.i(m)
            RQ.run(c.spread if k<3 else 99)
            if c.nofill and s<13: F.q=[]
            if D.q: D.run(1)
            else: F.run(per)
    F.flush(); D.flush(); stamp(e,c,16)
    if c.merged:
        e.wait(lg="*"); e.i("s_barrier"); c.after_mfma(e)
    else: e.i("s_nop 7\ns_nop 3")
    stamp(e,c,24)
    ffn_epi(e,c,F,1); F.flush(); stamp(e,c,17)
    poll_check(e); stamp(e,c,18)
    ssm_c(e,c,F); F.flush()
    if c.merged:
        for f in c.late(e,15): f()
    stamp(e,c,19)
    e.i("Lp1end:")
    tail(e)
    e.restore(zstate); e.i("Lzpath:\ns_nop 7\ns_nop 3")
    ssm_a(e,F); F.flush(); e.wait(vm="*",lg="*"); e.i("s_barrier")
    ssm_b(e,F); F.flush(); gate(e,c)
    if c.merged:
        e.wait(lg="*"); e.i("s_barrier"); c.setup_early(e)
        for s in (11,12,13):
            for f in c.late(e,s): f()
    poll_prep(e); poll_issue(e); poll_check(e); ssm_c(e,c,F); F.flush()
    if c.merged:
        for f in c.late(e,15): f()
        c.fl_issue(e); c.after_mfma(e)
    e.wait(vm="*",lg="*"); e.i("s_branch Lp1end")
```

```python
from gen1 import *
from gen2 import kinfo,KN,kdesc,khead
AC=0; HE=64; HB=128; NH=6; BF=176; VW=DB; VW1=192; VC=193; VH1=195; RT=196; RC=202; GV=206; WA=222; FLV=RA+2; FLA=SA
TA=[38,39,40,41,42,43,44]; TS=[76,77,78,79]
BS=[32768,98304,49152,114688,147456,0,65536,16384,81920,131072,32768,98304,49152,114688]
CR=[(0,1),(2,3)]
def setup_early(e,c):
    e.i("s_and_b32 s98, s2, 7\ns_lshl_b32 s98, s98, 2\ns_lshr_b32 s3, s2, 6\ns_add_u32 s98, s98, s3\ns_bfe_u32 s99, s2, 0x30003")
    e.i("s_lshl_b32 s3, s3, 1\ns_add_u32 s3, s3, s99\ns_cmp_ge_u32 s3, 7\ns_cselect_b32 s74, 7, 0\ns_sub_u32 s3, s3, s74" if c.rot2 else "s_mov_b32 s3, 0")
    e.i(f"s_lshl_b32 s{TA[0]}, s3, 13")
    for a in range(1,7): e.i(f"s_add_u32 s3, s{TA[a-1]}, 8192\ns_cmp_ge_u32 s3, {7*8192}\ns_cselect_b32 s{TA[a]}, 0, s3")
    e.i("s_mul_i32 s3, s70, 56\ns_add_u32 s3, s3, s7\ns_lshl_b32 s96, s3, 14\ns_add_u32 s97, s96, 65536\ns_lshl_b32 s3, s3, 10")
    e.i(f"s_mul_i32 s73, s98, {2*176*1024}\ns_add_u32 s100, s73, s3\ns_add_u32 s101, s100, 4096\ns_lshr_b32 s45, s98, 1\ns_lshl_b32 s45, s45, 13\ns_add_u32 s45, s45, {S_OFF+4096}")
    srd(e,8,60,1792*1024)
    t0,t1=T+11,T+12
    e.i(f"v_lshrrev_b32 v{t1}, 3, v{LANE}\nv_and_b32 v{t0}, 2, v{t1}\nv_lshlrev_b32 v{t0}, 1, v{t0}\nv_xor_b32 v{t0}, v{t0}, v{LANE}\nv_and_b32 v{t0}, 7, v{t0}\ns_lshl_b32 s3, s99, 7\nv_lshl_add_u32 v{t0}, v{t0}, 4, s3\nv_lshl_add_u32 v{VW}, v{t1}, 10, v{t0}")
def bdma_f(e,n):
    _,a,G=kinfo(n)
    def one(q):
        e.i(f"s_add_u32 m0, s71, {BS[n]+q*1024}\ns_lshl4_add_u32 s74, s{TA[a]}, s{96+G}")
        if q: e.i("s_add_u32 s74, s74, 8192")
        e.vm(f"buffer_load_dwordx4 v{VW}, s[8:11], s74 offen lds",("b",n))
    return [lambda q=q: one(q) for q in range(2)]
def bdma_s(e,b,nt):
    return [lambda q=q: dma(e,71,(q>>1)*65536+CR[b][nt]*16384+(q&1)*1024,VC+(q&1),20,(4*nt+q)*8192,("b",14+4*b),82+b) for q in range(4)]
def late(e,s):
    L=[]
    for n in {11:(0,1),12:(2,3,4),13:(5,6),14:(7,8),15:(9,)}[s]: L+=bdma_f(e,n)
    return L
def hreg(n): return HE+8*n if n<7 else HB+8*((n-7)%NH)
def hload(e,c,n):
    k,a,b=kinfo(n); hb=hreg(n)
    e.i(f"s_add_u32 s74, s{100+b}, s{TA[a]}" if k=="f" else f"s_add_u32 s74, s{80+a}, s{TS[b]}")
    for mt in range(2): e.vm(f"buffer_load_dwordx4 v[{hb+4*mt}:{hb+4*mt+3}], v{VH1 if mt else L16}, s[28:31], s74 offen {c.ld}",("h2",n))
def fl_load(): return f"buffer_load_dword v{FLV}, v{FLA}, s[28:31], s45 offen sc1"
def fl_issue(e,first=True):
    if first: e.i(f"v_and_b32 v{FLA}, 15, v{LANE}\nv_lshlrev_b32 v{FLA}, 2, v{FLA}")
    e.vm(fl_load(),"fl")
def fl_check(e,stage): e.wait(vm="fl"); spin(e,FLV,fl_load(),f"v_cmp_gt_i32 vcc, {stage}, v{FLV}","0x3fff" if stage==1 else "0xffff")
def after_mfma(e,c):
    e.i(f"v_add_u32 v{VH1}, {176*1024}, v{L16}")
    fl_check(e,1)
    for n in range(7): hload(e,c,n)
    for f in late(e,14): f()
def setup_late(e,c):
    e.i("s_and_b32 s3, s4, 1\ns_cmp_eq_u32 s3, 1"); e.i("s_cselect_b32 s20, s48, s46\ns_cselect_b32 s21, s49, s47\ns_mov_b32 s22, 0x80000\ns_mov_b32 s23, 0x20000")
    e.i("s_lshl_b32 s3, s3, 5\ns_add_u32 s3, s3, 112\ns_lshr_b32 s82, s4, 1\ns_lshl_b32 s74, s82, 2\ns_add_u32 s3, s3, s74\ns_lshl_b32 s3, s3, 10\ns_add_u32 s80, s73, s3\ns_lshl_b32 s82, s82, 7")
    e.i("s_bfe_u32 s3, s99, 0x10002" if c.rot2 else "s_mov_b32 s3, 0")
    e.i("s_lshl_b32 s74, s3, 14\ns_xor_b32 s81, s74, 0x4000\ns_add_u32 s81, s81, s80\ns_add_u32 s80, s80, s74\ns_lshl_b32 s74, s3, 9\ns_xor_b32 s83, s74, 0x200\ns_add_u32 s83, s83, s82\ns_add_u32 s82, s82, s74")
    r8,t0,t1,t2=T,T+2,T+3,T+4
    e.i(f"v_lshrrev_b32 v{r8}, 3, v{LANE}\nv_lshrrev_b32 v{t0}, 4, v{LANE}\nv_xor_b32 v{t0}, v{t0}, v{LANE}\nv_and_b32 v{t0}, 7, v{t0}\ns_lshl_b32 s3, s99, 16\nv_lshl_add_u32 v{t0}, v{t0}, 4, s3\nv_lshl_add_u32 v{VC}, v{r8}, 10, v{t0}\nv_xor_b32 v{VC+1}, 64, v{VC}")
    e.i(f"v_lshrrev_b32 v{t0}, 5, v{LANE}\nv_bfe_u32 v{t1}, v{LANE}, 2, 2\nv_lshl_add_u32 v{t0}, v{t0}, 2, v{t1}\nv_lshl_add_u32 v{t0}, v{t0}, 7, s71\nv_bfe_u32 v{t1}, v{LANE}, 3, 1\nv_lshl_add_u32 v{t0}, v{t1}, 6, v{t0}")
    e.i(f"v_bfe_u32 v{t1}, v{LANE}, 4, 1\nv_lshl_add_u32 v{t0}, v{t1}, 5, v{t0}\nv_and_b32 v{t1}, 3, v{LANE}\nv_lshl_add_u32 v{RT}, v{t1}, 3, v{t0}\nv_xor_b32 v{RT+1}, 64, v{RT}")
    for k in range(2,6): e.i(f"v_add_u32 v{RT+k}, 0x10000, v{RT+k-2}")
def setup_late2(e,c):
    t0,t1,t2=T+2,T+3,T+4
    e.i(f"v_and_b32 v{t0}, 15, v{LANE}\nv_lshrrev_b32 v{t1}, 5, v{LANE}\nv_lshrrev_b32 v{t2}, 1, v{t0}\nv_xor_b32 v{t2}, v{t1}, v{t2}\nv_lshl_add_u32 v{t0}, v{t0}, 7, s71\nv_lshl_add_u32 v{t0}, v{t2}, 4, v{t0}\nv_bfe_u32 v{t2}, v{LANE}, 4, 1\nv_lshl_add_u32 v{t0}, v{t2}, 16, v{t0}")
    for k in range(4):
        e.i((f"s_add_u32 s3, s99, {k}\ns_and_b32 s3, s3, 3" if c.rot2 else f"s_mov_b32 s3, {k}")+f"\ns_lshl_b32 s{TS[k]}, s3, 10\ns_lshl_b32 s3, s3, 5\nv_xor_b32 v{RC+k}, s3, v{t0}")
    e.i(f"v_and_b32 v{t2}, 7, v{LANE}\nv_xor_b32 v{t1}, v{t1}, v{t2}\nv_lshl_add_u32 v{t0}, v{t2}, 8, s71\nv_lshl_add_u32 v{t0}, v{t1}, 4, v{t0}\nv_bfe_u32 v{t2}, v{LANE}, 3, 2\nv_lshl_add_u32 v{WA}, v{t2}, 14, v{t0}")
    for k in range(1,4): e.i(f"v_xor_b32 v{WA+k}, {32*k}, v{WA}")
    for k in range(4): e.i(f"v_add_u32 v{WA+4+k}, 0x10000, v{WA+k}")
def breads(e,n):
    k,a,b=kinfo(n); bf=BF+8*(n&1)
    for nt in range(2):
        if k=="f":
            for h in range(2): e.ds(f"ds_read_b64_tr_b16 v[{bf+4*nt+2*h}:{bf+4*nt+2*h+1}], v{RT+nt+2*(BS[n]>>16)} offset:{(BS[n]&65535)+h*1024}",("br",n))
        else: e.ds(f"ds_read_b128 v[{bf+4*nt}:{bf+4*nt+3}], v{RC+b} offset:{CR[a][nt]*16384}",("br",n))
def epi_loads(e,c):
    t0,t1,t2=T,T+1,T+2
    e.i(f"v_and_b32 v{t0}, 31, v{LANE}\nv_lshlrev_b32 v{t0}, 2, v{t0}\ns_lshl_b32 s3, s98, 8\ns_add_u32 s3, s3, {G_OFF}")
    for mt in range(2): e.vm(f"buffer_load_dword v{GV+mt}, v{t0}, s[28:31], s3 offen offset:{128*mt} sc1","g")
    e.i(f"s_lshl_b32 s74, s4, 2\nv_lshrrev_b32 v{t0}, 4, v{LANE}\nv_add_u32 v{t0}, s74, v{t0}\nv_lshlrev_b32 v{t1}, 2, v{t0}")
    for mt in range(2): e.vm(f"buffer_load_dword v{GV+2+mt}, v{t1}, s[28:31], s3 offen offset:{128*mt} sc1","g")
    tau(e,t1,t0,t2)
    e.i(f"s_lshl_b32 s3, s98, 6\nv_add_u32 v{t1}, s3, v{t1}\nv_and_b32 v{t2}, 15, v{LANE}\ns_lshl_b32 s3, s99, 4\nv_add_u32 v{T+3}, s3, v{t2}\nv_lshlrev_b32 v{T+3}, 3, v{T+3}\nv_lshl_add_u32 v{t1}, v{t1}, 10, v{T+3}")
    e.vm(f"global_load_dwordx2 v[{T+4}:{T+5}], v{T+3}, s[52:53]","g")
    e.vm(f"global_load_dwordx2 v[{T+6}:{T+7}], v{t1}, s[36:37]","g")
    e.i(f"v_add_u32 v{T+3}, 0x8000, v{t1}")
    e.vm(f"global_load_dwordx2 v[{T+8}:{T+9}], v{T+3}, s[36:37]","g")
    e.i(f"v_lshlrev_b32 v{GV+4}, 1, v{t1}\nv_and_b32 v{T+3}, 7, v{t0}\nv_xor_b32 v{t2}, v{t2}, v{T+3}\nv_lshlrev_b32 v{t2}, 4, v{t2}\nv_lshl_add_u32 v{t2}, v{T+3}, 8, v{t2}\nv_lshrrev_b32 v{t0}, 3, v{t0}\nv_lshl_add_u32 v{GV+5}, v{t0}, 14, v{t2}")
def phase2(e,c):
    setup_late(e,c)
    e.wait(vm=("b",0)); breads(e,0); setup_late2(e,c); stamp(e,c,32)
    for n in range(22):
        k,a,b=kinfo(n)
        if n+1<22: e.wait(vm=("b",n+1)); breads(e,n+1)
        e.wait(lg=("br",n),vm=("h2",n))
        q={1:lambda: bdma_f(e,10)+bdma_f(e,11),3:lambda: bdma_f(e,12)+bdma_f(e,13),6:lambda: bdma_s(e,0,0),8:lambda: bdma_s(e,0,1),11:lambda: bdma_s(e,1,0),13:lambda: bdma_s(e,1,1)}.get(n,lambda: [])()
        bf=BF+8*(n&1); hb=hreg(n)
        for nt in range(2):
            for mt in range(2):
                a0=AC+(0 if k=="f" else 64)+(2*nt+mt)*16
                e.i(f"v_mfma_f32_32x32x16_bf16 v[{a0}:{a0+15}], v[{bf+4*nt}:{bf+4*nt+3}], v[{hb+4*mt}:{hb+4*mt+3}], "+("0" if n in (0,14) else f"v[{a0}:{a0+15}]"))
                if q: q.pop(0)()
        if n==c.fbar:
            e.wait(vm="hs"); e.i("s_barrier"); flag_store(e,2,5,6); stamp(e,c,33)
        if n==c.fiss: fl_issue(e,False)
        if n==c.fchk:
            fl_check(e,2); stamp(e,c,34)
            for n2 in range(7,7+NH): hload(e,c,n2)
        if n>=7 and n+NH<22: hload(e,c,n+NH)
        if n==16: epi_loads(e,c)
        if n==13: stamp(e,c,37)
    stamp(e,c,35)
    e.wait(vm="g")
    for mt in range(2): e.i(f"v_sub_f32 v{T+mt}, 1.0, v{GV+mt}\nv_cvt_pk_bf16_f32 v{T+mt}, v{T+mt}, v{T+mt}\nv_lshlrev_b32 v{T+mt}, 16, v{T+mt}")
    for i in range(4):
        for r in range(16): e.i(f"v_mul_f32 v{AC+16*i+r}, v{T+(i&1)}, v{AC+16*i+r}")
    for i in range(4):
        nt,mt=i>>1,i&1
        for qq in range(4):
            for r in range(4): e.i(f"v_fmac_f32 v{AC+16*i+4*qq+r}, v{GV+mt}, v{AC+64+16*i+4*qq+r}")
            e.ds(f"ds_write_b128 v{WA+4*mt+qq}, v[{AC+16*i+4*qq}:{AC+16*i+4*qq+3}] offset:{nt*128}","rw")
    for cc in range(2):
        xs=T+6+2*cc; o=HB+4*cc
        for k in range(2):
            e.i(f"v_lshlrev_b32 v{T}, 16, v{xs+k}\nv_lshlrev_b32 v{T+1}, 16, v{T+4+k}\nv_and_b32 v{T+2}, 0xffff0000, v{xs+k}\nv_and_b32 v{T+3}, 0xffff0000, v{T+4+k}\nv_mul_f32 v{T}, v{T}, v{T+1}\nv_mul_f32 v{T+2}, v{T+2}, v{T+3}\nv_cvt_pk_bf16_f32 v{T}, v{T}, v{T+2}")
            e.i(f"v_lshlrev_b32 v{o+2*k}, 16, v{T}\nv_and_b32 v{o+2*k+1}, 0xffff0000, v{T}\nv_mul_f32 v{o+2*k}, v{o+2*k}, v{GV+2+cc}\nv_mul_f32 v{o+2*k+1}, v{o+2*k+1}, v{GV+2+cc}")
    e.i(f"v_add_u32 v{T}, 0x10000, v{GV+5}")
    srd(e,24,64,2048*2048)
    e.wait(lg="*"); e.i("s_barrier"); stamp(e,c,36)
    for cc in range(2):
        for p in range(8): e.ds(f"ds_read_b128 v[{32*cc+4*p}:{32*cc+4*p+3}], v{T if cc else GV+5} offset:{p*2048}",("rr",cc,p))
    for cc in range(2):
        o=HB+4*cc
        for p in range(8):
            e.wait(lg=("rr",cc,p))
            for r in range(4): e.i(f"v_add_f32 v{o+r}, v{o+r}, v{32*cc+4*p+r}")
        e.i(f"s_mov_b32 s3, {cc*65536}")
        e.vm(f"buffer_store_dwordx4 v[{o}:{o+3}], v{GV+4}, s[24:27], s3 offen {c.ost}")
def gen(c):
    c.merged=1; c.late=late; c.setup_early=lambda e: setup_early(e,c); c.fl_issue=fl_issue; c.after_mfma=lambda e: after_mfma(e,c)
    e=E(); common_prologue(e,c)
    phase1(e,c,lambda e: (phase2(e,c), prof_end(e,c,0), dbg_time(e,c), e.i("Lexit:\ns_endpgm")))
    hdr=open("cdna_kernels/"+KN+".s.ref").read().split("; Override")[0]
    n=KN+"_kernel"
    return hdr+"; @launch grid=(256,1,1) block=(512,1,1) lds=163840\n"+'.amdgcn_target "amdgcn-amd-amdhsa--gfx950"\n.text\n'+khead(n)+"\n".join(e.L)+'\n.section .rodata,"a"\n'+kdesc(n)
if __name__=="__main__":
    import sys
    c=Cfg(); c.ld="sc1"; c.rot2=1; c.fbar=1; c.fiss=4; c.fchk=6; c.ost=""
    for a in sys.argv[2:]:
        k,v=a.split("="); setattr(c,k,int(v) if v.lstrip("-").isdigit() else v)
    open(sys.argv[1],"w").write(gen(c))
```

```python
from emit import *
S_OFF=0xC20000; G_OFF=0xC10000; PROF=0xD00000; WS_SIZE=0xE00000
SCR=131072
LOG2E="0x3fb8aa3b"; NLOG2E="0xbfb8aa3b"
X=0; AF=128; AS=160; FB=176; RA=208; RW=212; DX=214; DW=216; DB=218; L16=219; LANE=220; SA=221
LAM=222; L8=224; L16P=226; L32=228; L128=230; L512=232; L1024=234; LQ=236; LP=238; CO=240; T=242; PV=255
class Cfg:
    prof=0; pre_bar=1; merged=0; st="sc1"; nodma=0; nofill=0; noread=0; nomfma=0; few=0; noatom=0; spread=4; rot=1; ibar=0; dbgt=0; dist=3; pre=2
def stamp(e,c,idx,real=False):
    if not c.prof and not (c.dbgt and idx<2): return
    if c.few and idx not in (0,1,2,3,6,10,12,16,17,18,19,24,32,33,34,35,36,37,62,63): return
    e.i(f"{'s_memrealtime' if real else 's_memtime'} s[92:93]"); e.wait(lg="*"); e.i(f"v_writelane_b32 v{PV}, s92, {idx}")
def prof_end(e,c,kid):
    if not c.prof: return
    stamp(e,c,62); stamp(e,c,63,True)
    e.i(f"s_lshl_b32 s92, s2, 3\ns_add_u32 s92, s92, s4\ns_lshl_b32 s92, s92, 8\ns_add_u32 s92, s92, {PROF+kid*0x80000}")
    e.i(f"v_mbcnt_lo_u32_b32 v254, -1, 0\nv_mbcnt_hi_u32_b32 v254, -1, v254\nv_lshlrev_b32 v254, 2, v254")
    e.vm(f"buffer_store_dword v{PV}, v254, s[28:31], s92 offen")
def srd(e,d,p,n):
    e.i(f"s_mov_b32 s{d}, s{p}\ns_mov_b32 s{d+1}, s{p+1}\ns_mov_b32 s{d+2}, {n}\ns_mov_b32 s{d+3}, 0x20000")
def tau(e,d,s,t):
    e.i(f"v_and_b32 v{d}, 4, v{s}\nv_lshlrev_b32 v{d}, 2, v{d}\nv_and_or_b32 v{d}, v{s}, 3, v{d}\nv_lshrrev_b32 v{t}, 3, v{s}\nv_lshl_or_b32 v{d}, v{t}, 2, v{d}")
def cmac(d,a,b):
    return f"v_fmac_f32 v{d[0]}, v{a[0]}, v{b[0]}\nv_fmac_f32 v{d[1]}, v{a[0]}, v{b[1]}\nv_fma_f32 v{d[0]}, -v{a[1]}, v{b[1]}, v{d[0]}\nv_fmac_f32 v{d[1]}, v{a[1]}, v{b[0]}\n"
def P(x): return (x,x+1)
def csq(d,s,t): return f"v_mul_f32 v{t}, v{s+1}, v{s+1}\nv_mul_f32 v{t+1}, v{s}, v{s+1}\nv_fma_f32 v{d}, v{s}, v{s}, -v{t}\nv_add_f32 v{d+1}, v{t+1}, v{t+1}\n"
def cis(d,la,rev,t):
    return f"v_rndne_f32 v{t}, v{rev}\nv_exp_f32 v{t+1}, v{la}\nv_sub_f32 v{t}, v{rev}, v{t}\nv_cos_f32 v{d}, v{t}\nv_sin_f32 v{d+1}, v{t}\ns_nop 0\nv_mul_f32 v{d}, v{d}, v{t+1}\nv_mul_f32 v{d+1}, v{d+1}, v{t+1}\n"
def combine(ee,A,C,La,Lb):
    s=f"v_mov_b32 v{A}, v{ee}\nv_mov_b32 v{A+1}, v{ee+1}\ns_nop 1\nv_permlane16_swap_b32 v{A}, v{ee}\nv_permlane16_swap_b32 v{A+1}, v{ee+1}\ns_nop 0\n"
    s+=cmac(P(ee),P(La),P(A))
    s+=f"v_mov_b32 v{C}, v{ee}\nv_mov_b32 v{C+1}, v{ee+1}\ns_nop 1\nv_permlane32_swap_b32 v{C}, v{ee}\nv_permlane32_swap_b32 v{C+1}, v{ee+1}\ns_nop 0\n"
    s+=cmac(P(ee),P(Lb),P(C))
    return s
def dbg_time(e,c):
    if not c.dbgt: return
    sk=e.label()
    e.i(f"s_cmp_ge_u32 s2, 16\ns_cbranch_scc1 {sk}\ns_cmp_lg_u32 s4, 0\ns_cbranch_scc1 {sk}\ns_waitcnt vmcnt(0)\ns_memrealtime s[92:93]\ns_memtime s[10:11]\ns_waitcnt lgkmcnt(0)\nv_readlane_b32 s93, v255, 0\nv_readlane_b32 s11, v255, 1\ns_nop 3\ns_sub_u32 s92, s92, s93\ns_sub_u32 s10, s10, s11\ns_cmp_ge_u32 s2, 8\ns_cselect_b32 s92, s10, s92\ns_lshl_b32 s3, s2, 2\nv_mov_b32 v1, s3\nv_mov_b32 v2, s92\ns_mov_b64 exec, 1\nglobal_store_dword v1, v2, s[66:67] sc1\n{sk}:")
def common_prologue(e,c):
    e.i("s_cmp_ge_u32 s2, 256\ns_cbranch_scc1 Lexit")
    e.i("s_load_dwordx16 s[36:51], s[0:1], 0\ns_load_dwordx16 s[52:67], s[0:1], 64\ns_load_dwordx2 s[68:69], s[0:1], 128")
    e.i(f"v_lshrrev_b32 v1, 6, v0\nv_and_b32 v{LANE}, 63, v0\nv_readfirstlane_b32 s4, v1\nv_lshlrev_b32 v{L16}, 4, v{LANE}")
def dma(e,ldsb,ldso,voff,srdn,soff,tag,sbase=None):
    e.i(f"s_add_u32 m0, s{ldsb}, {ldso}")
    e.i(f"s_mov_b32 s74, {soff}" if sbase is None else f"s_add_u32 s74, s{sbase}, {soff}")
    e.vm(f"buffer_load_dwordx4 v{voff}, s[{srdn}:{srdn+3}], s74 offen lds",tag)
XS=[38,39,40,41,42,43,44,45]; WT=[50,51,54,55,56,57,58,59]
def dmas(e,ldsb,ldso,voff,srdn,sreg,tag,imm=0):
    e.i(f"s_add_u32 m0, s{ldsb}, {ldso-imm}\ns_nop 0")
    e.vm(f"buffer_load_dwordx4 v{voff}, s[{srdn}:{srdn+3}], s{sreg} offen "+(f"offset:{imm} " if imm else "")+"lds",tag)
def p1_dmas(e,s):
    sl=(s%4)*16384; tg=("d",s); L=[]
    if s<8:
        for q in range(2): L.append(lambda q=q: dmas(e,71,sl+q*1024,DX+q,8,XS[s],tg))
        for mt in range(2): L.append(lambda mt=mt: dmas(e,72,65536+sl+mt*8192,DW+mt,12+4*mt,WT[s],tg))
    elif s<10:
        for cp in range(2):
            for sc in range(2): L.append(lambda cp=cp,sc=sc: dmas(e,73,cp*65536+sl+sc*4096,DB,20+4*cp,98+2*(s-8)+sc,tg))
    elif s<14:
        for h in range(2):
            for mt in range(2): L.append(lambda h=h,mt=mt: dmas(e,72,mt*65536+sl+h*8192,DW+mt,12+4*mt,WT[2*(s-10)+h],tg))
    return L
def ffn_epi(e,c,F,G):
    for t in range(2):
        a=AF+16*t; R=range(8)
        F.text(e,"".join(f"v_mul_f32 v{a+8+r}, v{a+r}, v{a+8+r}\n" for r in R))
        for op in (f"v_mul_f32 v{{0}}, {NLOG2E}, v{{0}}","v_exp_f32 v{0}, v{0}","v_add_f32 v{0}, 1.0, v{0}","v_rcp_f32 v{0}, v{0}"):
            F.text(e,"".join(op.format(a+r)+"\n" for r in R))
        F.text(e,"".join(f"v_mul_f32 v{a+8+r}, v{a+r}, v{a+8+r}\n" for r in R))
        F.text(e,"".join(f"v_cvt_pk_bf16_f32 v{a+k}, v{a+8+2*k}, v{a+9+2*k}\n" for k in range(4)))
        F.add(lambda t=t,a=a: (e.i(f"s_add_u32 s74, s75, {(4*G+t)*1024}"), e.vm(f"buffer_store_dwordx4 v[{a}:{a+3}], v{L16}, s[32:35], s74 offen {c.st}",("h",G))))
def ssm_consts(e,F):
    lr,li,ld=T,T+1,T+2; t=T+4
    F.add(lambda: e.wait(vm="c"))
    s=f"v_lshlrev_b32 v{lr}, 16, v{lr}\nv_lshlrev_b32 v{li}, 16, v{li}\nv_lshlrev_b32 v{ld}, 16, v{ld}\nv_mul_f32 v{ld}, {LOG2E}, v{ld}\nv_exp_f32 v{ld}, v{ld}\ns_nop 0\nv_cvt_pk_bf16_f32 v{ld}, v{ld}, v{ld}\nv_lshlrev_b32 v{ld}, 16, v{ld}\n"
    la,rev=T+6,T+7
    s+=f"v_mul_f32 v{la}, v{ld}, v{lr}\nv_mul_f32 v{rev}, v{ld}, v{li}\nv_mul_f32 v{la}, {LOG2E}, v{la}\nv_mul_f32 v{rev}, 0.15915494, v{rev}\n"
    s+=cis(LAM,la,rev,t)
    s+=f"v_mul_f32 v{t}, v{lr}, v{lr}\nv_fmac_f32 v{t}, v{li}, v{li}\nv_rcp_f32 v{t}, v{t}\nv_add_f32 v{t+1}, -1.0, v{LAM}\nv_add_f32 v{t}, v{t}, v{t}\n"
    s+=f"v_mul_f32 v{CO}, v{t+1}, v{lr}\nv_mul_f32 v{CO+1}, v{LAM+1}, v{lr}\nv_fmac_f32 v{CO}, v{LAM+1}, v{li}\nv_fma_f32 v{CO+1}, -v{t+1}, v{li}, v{CO+1}\nv_mul_f32 v{CO}, v{CO}, v{t}\nv_mul_f32 v{CO+1}, v{CO+1}, v{t}\n"
    n=T+3
    s+=f"v_lshrrev_b32 v{n}, 4, v{LANE}\nv_lshlrev_b32 v{n}, 3, v{n}\nv_cvt_f32_u32 v{n}, v{n}\nv_mul_f32 v{lr}, v{la}, v{n}\nv_mul_f32 v{li}, v{rev}, v{n}\n"+cis(LQ,lr,li,t)
    s+=f"s_lshl_b32 s3, s7, 5\nv_cvt_f32_u32 v{ld}, s3\nv_add_f32 v{n}, v{n}, v{ld}\nv_mul_f32 v{lr}, v{la}, v{n}\nv_mul_f32 v{li}, v{rev}, v{n}\n"+cis(LP,lr,li,t)
    s+=csq(L8,LAM,t)+csq(L8,L8,t)+csq(L8,L8,t)+csq(L16P,L8,t)+csq(L32,L16P,t)+csq(L128,L32,t)+csq(L128,L128,t)+csq(L512,L128,t)+csq(L512,L512,t)+csq(L1024,L512,t)
    F.text(e,s)
PP=RA
def ssm_a(e,F):
    s="".join(f"v_permlane16_swap_b32 v{AS+r}, v{AS+8+r}\n" for r in range(8))
    for r in range(8):
        zr,zi=AS+r,AS+8+r; t=T+2*(r&1)
        s+=f"v_mul_f32 v{t}, v{CO+1}, v{zi}\nv_mul_f32 v{t+1}, v{CO+1}, v{zr}\nv_fma_f32 v{zr}, v{CO}, v{zr}, -v{t}\nv_fma_f32 v{zi}, v{CO}, v{zi}, v{t+1}\n"
    prev=(AS,AS+8)
    for r in range(1,8):
        n=P(T+2*(r&1))
        s+=f"v_fma_f32 v{n[0]}, v{LAM}, v{prev[0]}, v{AS+r}\nv_fma_f32 v{n[1]}, v{LAM}, v{prev[1]}, v{AS+8+r}\nv_fma_f32 v{n[0]}, -v{LAM+1}, v{prev[1]}, v{n[0]}\nv_fmac_f32 v{n[1]}, v{LAM+1}, v{prev[0]}\n"
        prev=n
    ee=T+2; A=T+4; C=T+6
    s+=combine(ee,A,C,L8,L16P)
    F.text(e,s)
    F.add(lambda: e.ds(f"ds_write_b64 v{SA}, v[{ee}:{ee+1}]","sw"))
    s=f"v_cndmask_b32 v{A}, 0, v{A}, s[76:77]\nv_cndmask_b32 v{A+1}, 0, v{A+1}, s[76:77]\nv_cndmask_b32 v{PP}, v{A}, v{C}, s[78:79]\nv_cndmask_b32 v{PP+1}, v{A+1}, v{C+1}, s[78:79]\n"
    s+=cmac(P(A),P(L8),P(C))+f"v_cndmask_b32 v{PP}, v{PP}, v{A}, s[80:81]\nv_cndmask_b32 v{PP+1}, v{PP+1}, v{A+1}, s[80:81]\n"
    F.text(e,s)
def ssm_b(e,F):
    W=T; R=T+8; ad=T+10
    F.text(e,f"s_lshl_b32 s3, s7, 7\nv_subrev_u32 v{ad}, s3, v{SA}")
    for k in range(4): F.add(lambda k=k: e.ds(f"ds_read_b64 v[{W+2*k}:{W+2*k+1}], v{ad} offset:{128*k}","sr"))
    F.add(lambda: e.wait(lg="sr"))
    s=cmac(P(W+2),P(L32),P(W))+cmac(P(W+4),P(L32),P(W+2))+cmac(P(W+6),P(L32),P(W+4))
    for k in range(2): s+=f"v_cmp_eq_u32 vcc, -1, v{W+6+k}\nv_mov_b32 v{ad}, 0x7fc00000\ns_nop 0\nv_cndmask_b32 v{W+6+k}, v{W+6+k}, v{ad}, vcc\n"
    s+=f"v_and_b32 v{ad}, 15, v{LANE}\nv_lshlrev_b32 v{ad}, 3, v{ad}\ns_lshl_b32 s3, s5, 8\ns_lshl_b32 s74, s70, 7\ns_add_u32 s3, s3, s74\n"
    s+=f"s_cmp_eq_u32 s7, 0\ns_cselect_b32 s3, s3, 0x10000\nv_add_u32 v{ad}, s3, v{ad}\n"
    F.text(e,s)
    F.add(lambda: cnt_check(e))
    F.add(lambda: (e.i("s_mov_b64 exec, 0xffff"), e.vm(f"buffer_store_dwordx2 v[{W+6}:{W+7}], v{ad}, s[88:91], 0 offen sc1","pub"), e.i("s_mov_b64 exec, -1")))
    s=""
    for k in range(2):
        s+=f"v_cndmask_b32 v{R+k}, 0, v{W+k}, s[82:83]\nv_cndmask_b32 v{R+k}, v{R+k}, v{W+2+k}, s[84:85]\nv_cndmask_b32 v{R+k}, v{R+k}, v{W+4+k}, s[86:87]\n"
    F.text(e,s+cmac(P(PP),P(LQ),P(R)))
def spin(e,reg,load,cmp,mask):
    ok=e.label(); lp=e.label()
    e.i(f"s_mov_b32 s94, 0\n{lp}:\n{cmp}\ns_add_u32 s94, s94, 1\ns_nop 2\ns_and_b32 s3, vcc_lo, {mask}\ns_cbranch_scc0 {ok}\ns_cmp_ge_u32 s94, 0x8000\ns_cbranch_scc1 {ok}\ns_sleep 2")
    e.i(f"{load}\ns_waitcnt vmcnt(0)\ns_branch {lp}\n{ok}:")
CNT=DX
def cnt_load(): return f"global_load_dword v{CNT}, v{CNT+1}, s[66:67] sc1"
def cnt_issue(e): e.i(f"v_and_b32 v{CNT+1}, 15, v{LANE}\nv_lshlrev_b32 v{CNT+1}, 2, v{CNT+1}"); e.vm(cnt_load(),"cnt")
def cnt_check(e): e.wait(vm="cnt"); spin(e,CNT,cnt_load(),f"v_cmp_eq_u32 vcc, 0, v{CNT}","0xffff")
def flag_store(e,val,sm,sj):
    sk=e.label(); e.i(f"s_cmp_lg_u32 s4, 0\ns_cbranch_scc1 {sk}\ns_lshl_b32 s3, s{sm}, 11\ns_add_u32 s3, s3, s{sj}\ns_lshl_b32 s3, s3, 2\ns_add_u32 s3, s3, {S_OFF+4096}\nv_mov_b32 v{T+12}, {val}\ns_mov_b64 exec, 1\nbuffer_store_dword v{T+12}, off, s[28:31], s3 sc1\ns_mov_b64 exec, -1\n{sk}:")
U=T; UB=RA+3
def poll_issue(e,track=True):
    for k in range(4):
        e.i(f"v_add_u32 v{U+2*k}, {256*k}, v{UB}")
    for k in range(4):
        t=f"buffer_load_dwordx2 v[{U+2*k}:{U+2*k+1}], v{U+2*k}, s[88:91], 0 offen sc1"
        e.vm(t,"poll") if track else e.i(t)
def poll_prep(e):
    e.i(f"v_lshrrev_b32 v{UB}, 4, v{LANE}\nv_lshlrev_b32 v{UB}, 10, v{UB}\nv_and_b32 v{U}, 15, v{LANE}\nv_lshl_add_u32 v{UB}, v{U}, 3, v{UB}")
    e.i(f"s_sub_u32 s3, s5, 16\ns_lshl_b32 s3, s3, 8\ns_lshl_b32 s74, s70, 7\ns_add_u32 s3, s3, s74\nv_add_u32 v{UB}, s3, v{UB}")
def poll_check(e):
    e.wait(vm="poll"); ok=e.label(); lp=e.label(); t=T+8
    e.i(f"s_mov_b32 s94, 0\n{lp}:\nv_max3_u32 v{t}, v{U}, v{U+1}, v{U+2}\nv_max3_u32 v{t}, v{t}, v{U+3}, v{U+4}\nv_max3_u32 v{t}, v{t}, v{U+5}, v{U+6}\nv_max_u32 v{t}, v{t}, v{U+7}")
    e.i(f"v_cmp_eq_u32 vcc, -1, v{t}\ns_add_u32 s94, s94, 1\ns_nop 3\ns_cbranch_vccz {ok}\ns_cmp_ge_u32 s94, 0x8000\ns_cbranch_scc1 {ok}\ns_sleep 1")
    poll_issue(e,False); e.i(f"s_waitcnt vmcnt(0)\ns_branch {lp}\n{ok}:")
def ssm_c(e,c,F):
    s=cmac(P(U+2),P(L128),P(U))+cmac(P(U+4),P(L128),P(U+2))+cmac(P(U+6),P(L128),P(U+4))
    s+=combine(U+6,U,U+2,L512,L1024)+cmac(P(PP),P(LP),P(U+6))
    prev=P(PP)
    for r in range(8):
        n=(AS+r,AS+8+r); s+=cmac(n,P(LAM),prev); prev=n
    wa,ra,t=T+8,T+9,T+10
    s+=f"v_and_b32 v{wa}, 15, v{LANE}\nv_lshlrev_b32 v{wa}, 6, v{wa}\nv_and_or_b32 v{wa}, v{LANE}, 48, v{wa}\ns_add_u32 s3, s71, {SCR}\nv_add_u32 v{wa}, s3, v{wa}\n"
    s+=f"v_lshrrev_b32 v{ra}, 5, v{LANE}\nv_bfe_u32 v{t}, v{LANE}, 2, 2\nv_lshl_add_u32 v{ra}, v{ra}, 3, v{t}\nv_lshlrev_b32 v{ra}, 6, v{ra}\nv_and_b32 v{t}, 1, v{LANE}\nv_lshl_add_u32 v{ra}, v{t}, 5, v{ra}\n"
    s+=f"v_and_or_b32 v{ra}, v{LANE}, 16, v{ra}\nv_and_b32 v{t}, 2, v{LANE}\nv_lshl_add_u32 v{ra}, v{t}, 2, v{ra}\ns_add_u32 s3, s71, {SCR}\nv_add_u32 v{ra}, s3, v{ra}\n"
    for k in range(4): s+=f"v_cvt_pk_bf16_f32 v{T+k}, v{AS+2*k}, v{AS+2*k+1}\n"
    for k in range(4): s+=f"v_cvt_pk_bf16_f32 v{T+4+k}, -v{AS+8+2*k}, -v{AS+9+2*k}\n"
    F.text(e,s)
    for cp in range(2): F.add(lambda cp=cp: e.ds(f"ds_write_b128 v{wa}, v[{T+4*cp}:{T+4*cp+3}] offset:{1024*cp}","tw"))
    F.add(lambda: e.wait(lg="tw"))
    for cp in range(2):
        for h in range(2): F.add(lambda cp=cp,h=h: e.ds(f"ds_read_b64_tr_b16 v[{AS+4*cp+2*h}:{AS+4*cp+2*h+1}], v{ra} offset:{1024*cp+256*h}","tr"))
    F.add(lambda: e.wait(lg="tr"))
    for cp in range(2): F.add(lambda cp=cp: (e.i(f"s_add_u32 s74, s95, {cp*32*1024}"), e.vm(f"buffer_store_dwordx4 v[{AS+4*cp}:{AS+4*cp+3}], v{L16}, s[28:31], s74 offen {c.st}","hs")))
def gate(e,c):
    skip=e.label()
    e.i(f"s_cmp_lg_u32 s6, 14\ns_cbranch_scc1 {skip}\ns_cmp_lg_u32 s70, 0\ns_cbranch_scc1 {skip}")
    e.i(f"v_lshrrev_b32 v{DW}, 5, v{LANE}\nv_lshlrev_b32 v{DW}, 4, v{DW}")
    for b in range(4):
        for k in range(8):
            if k%4==0: e.i(f"v_add_u32 v{DW+1}, s{XS[2*b+k//4]}, v{DW}")
            e.i(f"global_load_dwordx4 v[{FB+4*k}:{FB+4*k+3}], v{DW+1}, s[62:63] offset:{32*(k%4)}")
        e.i("s_waitcnt vmcnt(0)")
        for k in range(8):
            s=8*b+k; e.i(f"v_mfma_f32_32x32x16_bf16 v[{AF}:{AF+15}], v[{FB+4*k}:{FB+4*k+3}], v[{4*s}:{4*s+3}], "+("0" if s==0 else f"v[{AF}:{AF+15}]"))
    a=AF
    e.i(f"s_lshl_b32 s3, s5, 2\ns_add_u32 s3, s3, s7\ns_lshl_b32 s3, s3, 7\ns_add_u32 s3, s3, {G_OFF}\nv_and_b32 v{DW}, 31, v{LANE}\nv_lshlrev_b32 v{DW}, 2, v{DW}\ns_nop 15\ns_nop 3")
    e.i(f"v_cvt_pk_bf16_f32 v{a}, v{a}, v{a}\nv_lshlrev_b32 v{a}, 16, v{a}\nv_mul_f32 v{a}, {NLOG2E}, v{a}\nv_exp_f32 v{a}, v{a}\ns_nop 0\nv_add_f32 v{a}, 1.0, v{a}\nv_rcp_f32 v{a}, v{a}\ns_nop 0\nv_cvt_pk_bf16_f32 v{a}, v{a}, v{a}\nv_lshlrev_b32 v{a}, 16, v{a}")
    e.i(f"buffer_store_dword v{a}, v{DW}, s[28:31], s3 offen sc1\n{skip}:")
def phase1(e,c,tail):
    e.i("s_and_b32 s3, s2, 1\ns_lshl_b32 s3, s3, 3\ns_bfe_u32 s5, s2, 0x30003\ns_add_u32 s5, s5, s3")
    e.i("s_bfe_u32 s3, s2, 0x20001\ns_lshl_b32 s3, s3, 2\ns_lshr_b32 s6, s2, 6\ns_add_u32 s6, s6, s3")
    e.i("s_and_b32 s7, s4, 3\ns_lshr_b32 s70, s4, 2\ns_lshl_b32 s71, s4, 11\ns_lshl_b32 s72, s4, 10\ns_lshl_b32 s73, s70, 13\ns_lshl_b32 s3, s7, 10\ns_add_u32 s73, s73, s3")
    r8,p,t0,t1,t2=1,2,3,4,5
    e.i(f"v_lshrrev_b32 v{r8}, 3, v{LANE}\nv_and_b32 v{p}, 7, v{LANE}")
    for q in range(2):
        e.i(f"s_lshl_b32 s3, s4, 4\ns_add_u32 s3, s3, {8*q}\nv_add_u32 v{t0}, s3, v{r8}\nv_and_b32 v{t1}, 31, v{t0}")
        tau(e,DX+q,t1,t2)
        e.i(f"v_and_b32 v{t1}, 0x60, v{t0}\nv_add_u32 v{DX+q}, v{DX+q}, v{t1}\ns_lshl_b32 s3, s5, 7\nv_add_u32 v{DX+q}, s3, v{DX+q}\nv_bfe_u32 v{t0}, v{t0}, 1, 3\nv_xor_b32 v{t0}, v{t0}, v{p}\nv_lshlrev_b32 v{t0}, 4, v{t0}\nv_lshl_add_u32 v{DX+q}, v{DX+q}, 10, v{t0}")
    e.i(f"s_lshl_b32 s3, s4, 3\nv_add_u32 v{t0}, s3, v{r8}\nv_mul_u32_u24 v{t0}, 3584, v{t0}\ns_lshl_b32 s3, s6, 8\nv_add_u32 v{t0}, s3, v{t0}\nv_and_b32 v{t1}, 2, v{r8}\nv_xor_b32 v{t1}, v{t1}, v{p}")
    e.i(f"v_lshl_add_u32 v{DW}, v{t1}, 4, v{t0}\nv_xor_b32 v{t1}, 4, v{t1}\nv_lshl_add_u32 v{DW+1}, v{t1}, 4, v{t0}")
    e.i("s_waitcnt lgkmcnt(0)")
    srd(e,8,36,2048*1024); srd(e,12,56,512*3584); srd(e,16,58,512*3584); srd(e,28,68,WS_SIZE); srd(e,32,68,WS_SIZE)
    e.i(f"s_cmp_lt_u32 s6, 14\ns_cselect_b32 s14, s14, 0\ns_cselect_b32 s18, s18, 0\ns_cselect_b32 s34, s34, 0")
    srd(e,88,68,4096); e.i(f"s_lshl_b32 s3, s6, 13\ns_add_u32 s3, s3, {S_OFF}\ns_add_u32 s88, s88, s3\ns_addc_u32 s89, s89, 0")
    stamp(e,c,0,True); stamp(e,c,1)
    e.i(f"s_lshl_b32 s3, s6, 1\ns_add_u32 s3, s3, s70\ns_lshl_b32 s3, s3, 5\nv_and_b32 v{t0}, 15, v{LANE}\nv_lshl_add_u32 v{t0}, v{t0}, 1, s3")
    for k,pp in enumerate((38,40,50)): e.vm(f"global_load_ushort v{T+k}, v{t0}, s[{pp}:{pp+1}]","c")
    srd(e,20,42,512*1024); srd(e,24,44,512*1024)
    e.i("s_lshl_b32 s97, s6, 1\ns_add_u32 s97, s97, s5" if c.rot else "s_mov_b32 s97, 0")
    for k in range(8): e.i(f"s_add_u32 s3, s97, {k}\ns_and_b32 s3, s3, 7\ns_lshl_b32 s{XS[k]}, s3, 7\ns_mul_i32 s{WT[k]}, s3, {64*3584}")
    for k in range(4): e.i(f"s_cmp_eq_u32 s70, 0\ns_cselect_b32 s{98+k}, s{XS[4*(k>>1)+(k&1)]}, s{XS[4*(k>>1)+2+(k&1)]}")
    stamp(e,c,20)
    for s in range(c.pre):
        for f in p1_dmas(e,s): f()
        if s==0:
            sk=e.label()
            e.i(f"s_cmp_lg_u32 s6, 15\ns_cbranch_scc1 {sk}\ns_cmp_ge_u32 s4, 5\ns_cbranch_scc1 {sk}\ns_lshl_b32 s3, s5, 13\ns_add_u32 s3, s3, s72\ns_add_u32 s3, s3, {S_OFF}")
            e.i(f"v_mov_b32 v8, -1\nv_mov_b32 v9, -1\nv_mov_b32 v10, -1\nv_mov_b32 v11, -1\nbuffer_store_dwordx4 v[8:11], v{L16}, s[28:31], s3 offen sc1\ns_waitcnt vmcnt(0)\n{sk}:")
        if c.ibar and s<c.pre-1: e.i("s_barrier")
        stamp(e,c,21+s)
    e.i(f"s_lshl_b32 s3, s7, 3\nv_add_u32 v{t0}, s3, v{r8}\nv_bfe_u32 v{t1}, v{t0}, 1, 3\nv_xor_b32 v{t1}, v{t1}, v{p}\ns_lshl_b32 s3, s6, 5\nv_add_u32 v{t0}, s3, v{t0}\nv_lshlrev_b32 v{t0}, 10, v{t0}\nv_lshl_add_u32 v{DB}, v{t1}, 4, v{t0}")
    e.i(f"v_and_b32 v{t0}, 31, v{LANE}\nv_lshrrev_b32 v{t1}, 5, v{LANE}\nv_bfe_u32 v{t2}, v{t0}, 1, 3\nv_xor_b32 v{t1}, v{t1}, v{t2}\ns_lshl_b32 s3, s7, 12\nv_lshl_add_u32 v{t0}, v{t0}, 7, s3\nv_lshl_add_u32 v{RA}, v{t1}, 4, v{t0}")
    for k in range(1,4): e.i(f"v_xor_b32 v{RA+k}, {32*k}, v{RA}")
    e.i(f"v_lshrrev_b32 v{t0}, 5, v{LANE}\nv_bfe_u32 v{t1}, v{LANE}, 2, 2\nv_lshl_add_u32 v{t0}, v{t0}, 3, v{t1}\nv_lshlrev_b32 v{t0}, 7, v{t0}\nv_and_b32 v{t1}, 3, v{LANE}\nv_lshl_add_u32 v{t0}, v{t1}, 3, v{t0}")
    e.i(f"v_bfe_u32 v{t1}, v{LANE}, 4, 1\nv_lshl_add_u32 v{t0}, v{t1}, 13, v{t0}\nv_bfe_u32 v{t1}, v{LANE}, 3, 2\ns_lshl_b32 s3, s70, 1\nv_xor_b32 v{t1}, s3, v{t1}\nv_lshl_add_u32 v{t0}, v{t1}, 5, v{t0}\nv_add_u32 v{RW}, 0x10000, v{t0}\nv_xor_b32 v{RW+1}, 32, v{RW}")
    e.i(f"s_lshl_b32 s3, s5, 2\ns_add_u32 s3, s3, s7\ns_mul_i32 s95, s3, {176*1024}\ns_lshl_b32 s3, s6, 13\ns_add_u32 s75, s95, s3\ns_lshl_b32 s3, s70, 11\ns_add_u32 s75, s75, s3")
    e.i(f"s_lshl_b32 s3, s6, 1\ns_add_u32 s3, s3, s70\ns_add_u32 s3, s3, 112\ns_lshl_b32 s3, s3, 10\ns_add_u32 s95, s95, s3")
    e.i(f"s_mov_b32 s76, 0xffff0000\ns_mov_b32 s77, 0xffff0000\ns_mov_b32 s78, 0\ns_mov_b32 s79, 0xffff\ns_mov_b32 s80, 0\ns_mov_b32 s81, 0xffff0000")
    for k in range(3): e.i(f"s_cmp_eq_u32 s7, {k+1}\ns_cselect_b64 s[{82+2*k}:{83+2*k}], -1, 0")
    e.i(f"v_and_b32 v{SA}, 15, v{LANE}\ns_lshl_b32 s3, s4, 7\ns_add_u32 s3, s3, {SCR+16384}\nv_lshl_add_u32 v{SA}, v{SA}, 3, s3")
    groups=[]
    for s in range(14):
        sl=(s%4)*16384
        for gi in range(2 if s<8 else 4):
            b=FB+16*(len(groups)&1); rd=[]; mf=[]
            if s<8 or s>=10:
                for kk in range(2):
                    sp=2*gi+kk; ks=(4*s if s<8 else 8*(s-10))+sp
                    if s<8: rd.append(f"ds_read_b128 v[{4*ks}:{4*ks+3}], v{RA+sp} offset:{sl}")
                    for t in range(2):
                        f=b+8*kk+4*t
                        for h in range(2): rd.append(f"ds_read_b64_tr_b16 v[{f+2*h}:{f+2*h+1}], v{RW+t} offset:{sl+(16*sp+4*h)*128}")
                        a=AF+16*t; mf.append(f"v_mfma_f32_32x32x16_bf16 v[{a}:{a+15}], v[{f}:{f+3}], v[{4*ks}:{4*ks+3}], "+("0" if ks==0 else f"v[{a}:{a+15}]"))
            else:
                for kk in range(4):
                    ks=16*(s-8)+4*gi+kk; f=b+4*kk
                    rd.append(f"ds_read_b128 v[{f}:{f+3}], v{RA+kk} offset:{sl+gi*4096}")
                    mf.append(f"v_mfma_f32_32x32x16_bf16 v[{AS}:{AS+15}], v[{4*ks}:{4*ks+3}], v[{f}:{f+3}], "+("0" if ks==0 else f"v[{AS}:{AS+15}]"))
            groups.append((s,gi,rd,mf))
    F=Fill(); D=Fill(); RQ=Fill(); n=len(groups)
    def sync(s):
        if s==12: e.wait(vm=("h",0))
        e.wait(vm=("d",s),lg="*"); e.i("s_barrier"); stamp(e,c,2+s)
        if s==0:
            sk=e.label(); e.i(f"s_cmp_lg_u32 s6, 15\ns_cbranch_scc1 {sk}\ns_cmp_lg_u32 s4, 0\ns_cbranch_scc1 {sk}\ns_lshl_b32 s3, s5, 2\nv_mov_b32 v1, s3\nv_mov_b32 v2, 1\ns_mov_b64 exec, 1\nglobal_store_dword v1, v2, s[66:67] sc1\ns_mov_b64 exec, -1\n{sk}:")
        if s==12 and c.merged: flag_store(e,1,5,6)
        if s==8-c.dist: D.flush(); e.i(f"v_add_u32 v{DW}, 128, v{DW}\nv_add_u32 v{DW+1}, 128, v{DW+1}")
        if s==8:
            a,b2=T+8,T+9
            e.i(f"v_and_b32 v{a}, 15, v{LANE}\nv_lshrrev_b32 v{b2}, 5, v{LANE}\nv_lshrrev_b32 v{RA}, 1, v{a}\nv_xor_b32 v{b2}, v{b2}, v{RA}\ns_lshl_b32 s3, s70, 11\nv_lshl_add_u32 v{a}, v{a}, 7, s3\nv_lshl_add_u32 v{a}, v{b2}, 4, v{a}\nv_bfe_u32 v{b2}, v{LANE}, 4, 1\nv_lshl_add_u32 v{RA}, v{b2}, 16, v{a}")
            for k in range(1,4): e.i(f"v_xor_b32 v{RA+k}, {32*k}, v{RA}")
            e.i(f"v_mul_u32_u24 v{b2}, {65536-8192}, v{b2}\nv_subrev_u32 v{b2}, 0x10000, v{b2}\nv_add_u32 v{RW}, v{RW}, v{b2}\nv_add_u32 v{RW+1}, v{RW+1}, v{b2}")
        for s2 in ([s+c.dist] if s else range(c.pre,c.dist+1)):
            for f in ([] if c.nodma or s2>13 else p1_dmas(e,s2)): D.add(f)
        if c.merged and s>=11:
            for f in c.late(e,s): D.add(f)
    def reads(g):
        for r in groups[g][2]:
            if c.noread and g>1: continue
            if c.spread: RQ.add(lambda r=r: e.ds(r,("r",g)))
            else: e.ds(r,("r",g))
    sync(0); reads(0); RQ.flush(); ssm_consts(e,F)
    zstate=None
    for g in range(n):
        s,gi,rd,mf=groups[g]
        nxt_first = g+1<n and groups[g+1][1]==0
        e.wait(lg=("r",g))
        if s==8 and gi==1: ffn_epi(e,c,F,0)
        if s==10 and gi==0:
            F.flush()
            cnt_issue(e)
            zstate=e.state(); zD=list(D.q); e.i("s_cmp_ge_u32 s6, 14\ns_cbranch_scc1 Lzpath")
        if s==10 and gi==1: ssm_a(e,F)
        if s==11 and gi==0: ssm_b(e,F)
        if s==12 and gi==2: F.add(lambda: poll_prep(e))
        if s==10 and gi==0 and c.merged: c.setup_early(e)
        if s==13 and gi==0 and c.merged: F.add(lambda: c.fl_issue(e))
        if s==13 and gi==1: F.add(lambda: poll_issue(e))
        per={8:5,9:6,10:9,11:5}.get(s,4)
        for k,m in enumerate(mf):
            if k==(c.pre_bar if nxt_first else 0) and g+1<n:
                if nxt_first:
                    if groups[g+1][0] in (11,12): F.flush()
                    D.flush(); sync(groups[g+1][0])
                reads(g+1)
            if not c.nomfma: e.i(m)
            RQ.run(c.spread if k<3 else 99)
            if c.nofill and s<13: F.q=[]
            if D.q: D.run(1)
            else: F.run(per)
    F.flush(); D.flush(); stamp(e,c,16)
    if c.merged:
        e.wait(lg="*"); e.i("s_barrier"); c.after_mfma(e)
    else: e.i("s_nop 7\ns_nop 3")
    stamp(e,c,24)
    ffn_epi(e,c,F,1); F.flush(); stamp(e,c,17)
    poll_check(e); stamp(e,c,18)
    ssm_c(e,c,F); F.flush()
    if c.merged:
        for f in c.late(e,15): f()
    stamp(e,c,19)
    e.i("Lp1end:")
    tail(e)
    e.restore(zstate); e.i("Lzpath:\ns_nop 7\ns_nop 3")
    ssm_a(e,F); F.flush(); e.wait(vm="*",lg="*"); e.i("s_barrier")
    ssm_b(e,F); F.flush(); gate(e,c)
    if c.merged:
        e.wait(lg="*"); e.i("s_barrier"); c.setup_early(e)
        for s in (11,12,13):
            for f in c.late(e,s): f()
    poll_prep(e); poll_issue(e); poll_check(e); ssm_c(e,c,F); F.flush()
    if c.merged:
        for f in c.late(e,15): f()
        c.fl_issue(e); c.after_mfma(e)
    e.wait(vm="*",lg="*"); e.i("s_branch Lp1end")
```

```python
from emit import *
S_OFF=0xC20000; G_OFF=0xC10000; PROF=0xD00000; WS_SIZE=0xE00000
SCR=131072
LOG2E="0x3fb8aa3b"; NLOG2E="0xbfb8aa3b"
X=0; AF=128; AS=160; FB=176; RA=208; RW=212; DX=214; DW=216; DB=218; L16=219; LANE=220; SA=221
LAM=222; L8=224; L16P=226; L32=228; L128=230; L512=232; L1024=234; LQ=236; LP=238; CO=240; T=242; PV=255
class Cfg:
    prof=0; pre_bar=1; merged=0; st="sc1"; nodma=0; nofill=0; noread=0; nomfma=0; few=0; noatom=0; spread=4; rot=1; leak=-1; ibar=0; ta=-1; tb=-1; tz=0; tzs=1; znt=0; slow=1; lpace=14; cin=0; hearly=7; dbgt=0; dist=3; pre=2
def stamp(e,c,idx,real=False):
    if c.leak>=0:
        if idx in (0,c.leak): e.i('s_memrealtime s[92:93]'); e.wait(lg='*'); e.i(f'v_writelane_b32 v{PV}, s92, {1 if idx else 0}')
        return
    if not c.prof and not (c.dbgt and idx<2): return
    if c.few==3 and idx in (32,40,41,50,51,53,54,55,56): pass
    elif c.few>=2 and idx not in (0,1,2,10,12,16,24,19,33,34,35,36,62,63): return
    elif c.few and idx not in (0,1,2,3,6,10,12,13,14,15,16,17,18,19,24,32,33,34,35,36,37,62,63): return
    e.i(f"{'s_memrealtime' if real else 's_memtime'} s[92:93]"); e.wait(lg="*"); e.i(f"v_writelane_b32 v{PV}, s92, {idx}")
def prof_end(e,c,kid):
    if not c.prof: return
    stamp(e,c,62); stamp(e,c,63,True)
    e.i(f"s_lshl_b32 s92, s2, 3\ns_add_u32 s92, s92, s4\ns_lshl_b32 s92, s92, 8\ns_add_u32 s92, s92, {PROF+kid*0x80000}")
    e.i(f"v_mbcnt_lo_u32_b32 v254, -1, 0\nv_mbcnt_hi_u32_b32 v254, -1, v254\nv_lshlrev_b32 v254, 2, v254")
    e.vm(f"buffer_store_dword v{PV}, v254, s[28:31], s92 offen")
def srd(e,d,p,n):
    e.i(f"s_mov_b32 s{d}, s{p}\ns_mov_b32 s{d+1}, s{p+1}\ns_mov_b32 s{d+2}, {n}\ns_mov_b32 s{d+3}, 0x20000")
def tau(e,d,s,t):
    e.i(f"v_and_b32 v{d}, 4, v{s}\nv_lshlrev_b32 v{d}, 2, v{d}\nv_and_or_b32 v{d}, v{s}, 3, v{d}\nv_lshrrev_b32 v{t}, 3, v{s}\nv_lshl_or_b32 v{d}, v{t}, 2, v{d}")
def cmac(d,a,b):
    return f"v_fmac_f32 v{d[0]}, v{a[0]}, v{b[0]}\nv_fmac_f32 v{d[1]}, v{a[0]}, v{b[1]}\nv_fma_f32 v{d[0]}, -v{a[1]}, v{b[1]}, v{d[0]}\nv_fmac_f32 v{d[1]}, v{a[1]}, v{b[0]}\n"
def P(x): return (x,x+1)
def csq(d,s,t): return f"v_mul_f32 v{t}, v{s+1}, v{s+1}\nv_mul_f32 v{t+1}, v{s}, v{s+1}\nv_fma_f32 v{d}, v{s}, v{s}, -v{t}\nv_add_f32 v{d+1}, v{t+1}, v{t+1}\n"
def cis(d,la,rev,t):
    return f"v_rndne_f32 v{t}, v{rev}\nv_exp_f32 v{t+1}, v{la}\nv_sub_f32 v{t}, v{rev}, v{t}\nv_cos_f32 v{d}, v{t}\nv_sin_f32 v{d+1}, v{t}\ns_nop 0\nv_mul_f32 v{d}, v{d}, v{t+1}\nv_mul_f32 v{d+1}, v{d+1}, v{t+1}\n"
def combine(ee,A,C,La,Lb):
    s=f"v_mov_b32 v{A}, v{ee}\nv_mov_b32 v{A+1}, v{ee+1}\ns_nop 1\nv_permlane16_swap_b32 v{A}, v{ee}\nv_permlane16_swap_b32 v{A+1}, v{ee+1}\ns_nop 0\n"
    s+=cmac(P(ee),P(La),P(A))
    s+=f"v_mov_b32 v{C}, v{ee}\nv_mov_b32 v{C+1}, v{ee+1}\ns_nop 1\nv_permlane32_swap_b32 v{C}, v{ee}\nv_permlane32_swap_b32 v{C+1}, v{ee+1}\ns_nop 0\n"
    s+=cmac(P(ee),P(Lb),P(C))
    return s
def dbg_time(e,c):
    if c.leak>=0:
        stamp(e,c,62); sk=e.label(); lp=e.label()
        e.i(f's_cmp_ge_u32 s2, 8\ns_cbranch_scc1 {sk}\ns_cmp_lg_u32 s4, 0\ns_cbranch_scc1 {sk}\nv_readlane_b32 s10, v255, 0\nv_readlane_b32 s11, v255, 1\ns_memrealtime s[12:13]\ns_waitcnt lgkmcnt(0)\ns_sub_u32 s10, s11, s10\ns_lshl_b32 s10, s10, 2\ns_min_u32 s10, s10, 20000\n{lp}:\ns_memrealtime s[14:15]\ns_waitcnt lgkmcnt(0)\ns_sub_u32 s14, s14, s12\ns_cmp_lt_u32 s14, s10\ns_cbranch_scc1 {lp}\n{sk}:')
    if not c.dbgt: return
    sk=e.label()
    e.i(f"s_cmp_ge_u32 s2, 16\ns_cbranch_scc1 {sk}\ns_cmp_lg_u32 s4, 0\ns_cbranch_scc1 {sk}\ns_waitcnt vmcnt(0)\ns_memrealtime s[92:93]\ns_memtime s[10:11]\ns_waitcnt lgkmcnt(0)\nv_readlane_b32 s93, v255, 0\nv_readlane_b32 s11, v255, 1\ns_nop 3\ns_sub_u32 s92, s92, s93\ns_sub_u32 s10, s10, s11\ns_cmp_ge_u32 s2, 8\ns_cselect_b32 s92, s10, s92\ns_lshl_b32 s3, s2, 2\nv_mov_b32 v1, s3\nv_mov_b32 v2, s92\ns_mov_b64 exec, 1\nglobal_store_dword v1, v2, s[66:67] sc1\n{sk}:")
TV=T+11; TJ=T+12
def touch1(e,w,p,sc,nl,kind,TV=TV):
    nx=e.label()
    e.i(f"s_cmp_lg_u32 s4, {w}\ns_cbranch_scc1 {nx}\n{sc}\nv_min_u32 v{TV}, {nl-1}, v{LANE}\nv_add_u32 v{TV}, s3, v{TV}")
    if kind=="g1": e.i(f"v_lshlrev_b32 v{TV}, 8, v{TV}\nv_add_u32 v{TV}, 128, v{TV}")
    elif kind=="lin": e.i(f"v_lshlrev_b32 v{TV}, 7, v{TV}")
    else: e.i(f"v_lshrrev_b32 v{TJ}, 9, v{TV}\nv_lshl_add_u32 v{TV}, v{TJ}, 9, v{TV}\nv_add_u32 v{TV}, {512 if kind=='w2b' else 0}, v{TV}\nv_lshlrev_b32 v{TV}, 7, v{TV}")
    e.i(f"global_load_dword v{TV}, v{TV}, s[{p}:{p+1}]\n{nx}:")
_a="s_mul_i32 s3, s2, 28"; _b="s_lshl_b32 s3, s2, 4"
TCH_A=[(12,_a,28,"g1"),(16,_a+"\ns_add_u32 s3, s3, 4",28,"g1"),(20,_b,16,"lin"),(24,_b,16,"lin"),(60,_a,28,"w2a"),(60,_a,28,"w2b"),(46,_b,16,"lin"),(48,_b,16,"lin")]
TCH_B=[(60,f"s_lshr_b32 s3, s2, 3\ns_mul_i32 s3, s3, 224\ns_add_u32 s3, s3, {56*w}",56,"w2b") for w in range(4)]+[(46+2*(w>>1),f"s_lshr_b32 s3, s2, 3\ns_lshl_b32 s3, s3, 7\ns_add_u32 s3, s3, {64*(w&1)}",64,"lin") for w in range(4)]
def common_prologue(e,c):
    e.i("s_cmp_ge_u32 s2, 256\ns_cbranch_scc1 Lexit")
    e.i("s_load_dwordx16 s[36:51], s[0:1], 0\ns_load_dwordx16 s[52:67], s[0:1], 64\ns_load_dwordx2 s[68:69], s[0:1], 128")
    e.i(f"v_lshrrev_b32 v1, 6, v0\nv_and_b32 v{LANE}, 63, v0\nv_readfirstlane_b32 s4, v1\nv_lshlrev_b32 v{L16}, 4, v{LANE}")
def dma(e,ldsb,ldso,voff,srdn,soff,tag,sbase=None):
    e.i(f"s_add_u32 m0, s{ldsb}, {ldso}")
    e.i(f"s_mov_b32 s74, {soff}" if sbase is None else f"s_add_u32 s74, s{sbase}, {soff}")
    e.vm(f"buffer_load_dwordx4 v{voff}, s[{srdn}:{srdn+3}], s74 offen lds",tag)
XS=[38,39,40,41,42,43,44,45]; WT=[50,51,54,55,56,57,58,59]
class DM:
    def __init__(s,e,pre,ld,tag): s.e,s.p,s.l,s.t,s.done=e,pre,ld,tag,False
    def pre(s):
        if s.p and not s.done: s.e.i(s.p); s.done=True
    def __call__(s):
        if s.p and not s.done:
            s.e.i(s.p)
            if s.p.split("\n")[-1].startswith("s_add_u32 m0"): s.e.i("s_nop 0")
        s.e.vm(s.l,s.t)
def ldl(voff,srdn,sreg,imm=0): return f"buffer_load_dwordx4 v{voff}, s[{srdn}:{srdn+3}], s{sreg} offen "+(f"offset:{imm} " if imm else "")+"lds"
def p1_dmas(e,s):
    sl=(s%4)*16384; tg=("d",s); L=[]
    m0=lambda b,o: f"s_add_u32 m0, s{b}, {o}"
    if s<8:
        for q in range(2): L.append(DM(e,None if q else m0(71,sl),ldl(DX+q,8,XS[s],1024*q),tg))
        for mt in range(2): L.append(DM(e,None if mt else m0(71,65536+sl),ldl(DW+mt,12+4*mt,WT[s],1024*mt),tg))
    elif s<10:
        for cp in range(2):
            for sc in range(2): L.append(DM(e,m0(73,cp*65536+sl+sc*4096),ldl(DB,20+4*cp,98+2*(s-8)+sc),tg))
    elif s<14:
        for h in range(2):
            for mt in range(2): L.append(DM(e,m0(72,mt*65536+sl+h*8192-1024*mt),ldl(DW+mt,12+4*mt,WT[2*(s-10)+h],1024*mt),tg))
    return L
def ffn_epi(e,c,F,G,pk=0):
    for t in range(2):
        a=AF+16*t; R=range(8)
        if pk:
            P2=lambda x: f"v[{x}:{x+1}]"; Q=range(a,a+8,2)
            s="".join(f"v_pk_mul_f32 {P2(r+8)}, {P2(r)}, {P2(r+8)}\nv_pk_mul_f32 {P2(r)}, {P2(r)}, s[84:85]\n" for r in Q)
            s+="".join(f"v_exp_f32 v{a+r}, v{a+r}\n" for r in R)+"".join(f"v_pk_add_f32 {P2(r)}, {P2(r)}, s[86:87]\n" for r in Q)
            s+="".join(f"v_rcp_f32 v{a+r}, v{a+r}\n" for r in R)+"".join(f"v_pk_mul_f32 {P2(r+8)}, {P2(r)}, {P2(r+8)}\n" for r in Q)
            if t==0: s=f"s_mov_b32 s84, {NLOG2E}\ns_mov_b32 s85, {NLOG2E}\ns_mov_b32 s86, 1.0\ns_mov_b32 s87, 1.0\n"+s
            F.text(e,s); R=[]
        F.text(e,"".join(f"v_mul_f32 v{a+8+r}, v{a+r}, v{a+8+r}\n" for r in R))
        for op in (f"v_mul_f32 v{{0}}, {NLOG2E}, v{{0}}","v_exp_f32 v{0}, v{0}","v_add_f32 v{0}, 1.0, v{0}","v_rcp_f32 v{0}, v{0}"):
            F.text(e,"".join(op.format(a+r)+"\n" for r in R))
        F.text(e,"".join(f"v_mul_f32 v{a+8+r}, v{a+r}, v{a+8+r}\n" for r in R))
        F.text(e,"".join(f"v_cvt_pk_bf16_f32 v{a+k}, v{a+8+2*k}, v{a+9+2*k}\n" for k in range(4)))
        F.add(lambda t=t,a=a: (e.i(f"s_add_u32 s74, s75, {(4*G+t)*1024}"), e.vm(f"buffer_store_dwordx4 v[{a}:{a+3}], v{L16}, s[32:35], s74 offen {c.st}",("h",G))))
def ssm_consts(e,F):
    lr,li,ld=T,T+1,T+2; t=T+4
    F.add(lambda: e.wait(vm="c"))
    s=f"v_lshlrev_b32 v{lr}, 16, v{lr}\nv_lshlrev_b32 v{li}, 16, v{li}\nv_lshlrev_b32 v{ld}, 16, v{ld}\nv_mul_f32 v{ld}, {LOG2E}, v{ld}\nv_exp_f32 v{ld}, v{ld}\ns_nop 0\nv_cvt_pk_bf16_f32 v{ld}, v{ld}, v{ld}\nv_lshlrev_b32 v{ld}, 16, v{ld}\n"
    la,rev=T+6,T+7
    s+=f"v_mul_f32 v{la}, v{ld}, v{lr}\nv_mul_f32 v{rev}, v{ld}, v{li}\nv_mul_f32 v{la}, {LOG2E}, v{la}\nv_mul_f32 v{rev}, 0.15915494, v{rev}\n"
    s+=cis(LAM,la,rev,t)
    s+=f"v_mul_f32 v{t}, v{lr}, v{lr}\nv_fmac_f32 v{t}, v{li}, v{li}\nv_rcp_f32 v{t}, v{t}\nv_add_f32 v{t+1}, -1.0, v{LAM}\nv_add_f32 v{t}, v{t}, v{t}\n"
    s+=f"v_mul_f32 v{CO}, v{t+1}, v{lr}\nv_mul_f32 v{CO+1}, v{LAM+1}, v{lr}\nv_fmac_f32 v{CO}, v{LAM+1}, v{li}\nv_fma_f32 v{CO+1}, -v{t+1}, v{li}, v{CO+1}\nv_mul_f32 v{CO}, v{CO}, v{t}\nv_mul_f32 v{CO+1}, v{CO+1}, v{t}\n"
    n=T+3
    s+=f"v_lshrrev_b32 v{n}, 4, v{LANE}\nv_lshlrev_b32 v{n}, 3, v{n}\nv_cvt_f32_u32 v{n}, v{n}\nv_mul_f32 v{lr}, v{la}, v{n}\nv_mul_f32 v{li}, v{rev}, v{n}\n"+cis(LQ,lr,li,t)
    s+=f"s_lshl_b32 s3, s7, 5\nv_cvt_f32_u32 v{ld}, s3\nv_add_f32 v{n}, v{n}, v{ld}\nv_mul_f32 v{lr}, v{la}, v{n}\nv_mul_f32 v{li}, v{rev}, v{n}\n"+cis(LP,lr,li,t)
    s+=csq(L8,LAM,t)+csq(L8,L8,t)+csq(L8,L8,t)+csq(L16P,L8,t)+csq(L32,L16P,t)+csq(L128,L32,t)+csq(L128,L128,t)+csq(L512,L128,t)+csq(L512,L512,t)+csq(L1024,L512,t)
    F.text(e,s)
PP=RA
def ssm_a(e,F):
    s="".join(f"v_permlane16_swap_b32 v{AS+r}, v{AS+8+r}\n" for r in range(8))
    for r in range(8):
        zr,zi=AS+r,AS+8+r; t=T+2*(r&1)
        s+=f"v_mul_f32 v{t}, v{CO+1}, v{zi}\nv_mul_f32 v{t+1}, v{CO+1}, v{zr}\nv_fma_f32 v{zr}, v{CO}, v{zr}, -v{t}\nv_fma_f32 v{zi}, v{CO}, v{zi}, v{t+1}\n"
    prev=(AS,AS+8)
    for r in range(1,8):
        n=P(T+2*(r&1))
        s+=f"v_fma_f32 v{n[0]}, v{LAM}, v{prev[0]}, v{AS+r}\nv_fma_f32 v{n[1]}, v{LAM}, v{prev[1]}, v{AS+8+r}\nv_fma_f32 v{n[0]}, -v{LAM+1}, v{prev[1]}, v{n[0]}\nv_fmac_f32 v{n[1]}, v{LAM+1}, v{prev[0]}\n"
        prev=n
    ee=T+2; A=T+4; C=T+6
    s+=combine(ee,A,C,L8,L16P)
    F.text(e,s)
    F.add(lambda: e.ds(f"ds_write_b64 v{SA}, v[{ee}:{ee+1}]","sw"))
    s=f"v_cndmask_b32 v{A}, 0, v{A}, s[76:77]\nv_cndmask_b32 v{A+1}, 0, v{A+1}, s[76:77]\nv_cndmask_b32 v{PP}, v{A}, v{C}, s[78:79]\nv_cndmask_b32 v{PP+1}, v{A+1}, v{C+1}, s[78:79]\n"
    s+=cmac(P(A),P(L8),P(C))+f"v_cndmask_b32 v{PP}, v{PP}, v{A}, s[80:81]\nv_cndmask_b32 v{PP+1}, v{PP+1}, v{A+1}, s[80:81]\n"
    F.text(e,s)
def ssm_b(e,F):
    W=T; R=T+8; ad=T+10
    F.text(e,f"s_lshl_b32 s3, s7, 7\nv_subrev_u32 v{ad}, s3, v{SA}")
    for k in range(4): F.add(lambda k=k: e.ds(f"ds_read_b64 v[{W+2*k}:{W+2*k+1}], v{ad} offset:{128*k}","sr"))
    F.add(lambda: e.wait(lg="sr"))
    s=cmac(P(W+2),P(L32),P(W))+cmac(P(W+4),P(L32),P(W+2))+cmac(P(W+6),P(L32),P(W+4))
    F.text(e,s)
    for k in range(2): F.add(lambda k=k: e.i(f"v_cmp_eq_u32 vcc, -1, v{W+6+k}\nv_mov_b32 v{ad}, 0x7fc00000\ns_nop 0\nv_cndmask_b32 v{W+6+k}, v{W+6+k}, v{ad}, vcc"))
    s=f"v_and_b32 v{ad}, 15, v{LANE}\nv_lshlrev_b32 v{ad}, 3, v{ad}\ns_lshl_b32 s3, s5, 8\ns_lshl_b32 s74, s70, 7\ns_add_u32 s3, s3, s74\n"
    s+=f"s_cmp_eq_u32 s7, 0\ns_cselect_b32 s3, s3, 0x10000\nv_add_u32 v{ad}, s3, v{ad}\n"
    F.text(e,s)
    F.add(lambda: (e.i("s_mov_b64 exec, 0xffff"), e.vm(f"buffer_store_dwordx2 v[{W+6}:{W+7}], v{ad}, s[88:91], 0 offen sc1","pub"), e.i("s_mov_b64 exec, -1")))
    s=""
    for k in range(2):
        s+=f"v_cndmask_b32 v{R+k}, 0, v{W+k}, s[82:83]\nv_cndmask_b32 v{R+k}, v{R+k}, v{W+2+k}, s[84:85]\nv_cndmask_b32 v{R+k}, v{R+k}, v{W+4+k}, s[86:87]\n"
    F.text(e,s+cmac(P(PP),P(LQ),P(R)))
def spin(e,reg,load,cmp,mask):
    ok=e.label(); lp=e.label()
    e.i(f"s_mov_b32 s94, 0\n{lp}:\n{cmp}\ns_add_u32 s94, s94, 1\ns_nop 2\ns_and_b32 s3, vcc_lo, {mask}\ns_cbranch_scc0 {ok}\ns_cmp_ge_u32 s94, 0x8000\ns_cbranch_scc1 {ok}\ns_sleep 2")
    e.i(f"{load}\ns_waitcnt vmcnt(0)\ns_branch {lp}\n{ok}:")
CNT=DX
def cnt_load(): return f"global_load_dword v{CNT}, v{CNT+1}, s[66:67] sc1"
def cnt_issue(e): e.i(f"v_and_b32 v{CNT+1}, 15, v{LANE}\nv_lshlrev_b32 v{CNT+1}, 2, v{CNT+1}"); e.vm(cnt_load(),"cnt")
def cnt_check(e): e.wait(vm="cnt"); spin(e,CNT,cnt_load(),f"v_cmp_eq_u32 vcc, 0, v{CNT}","0xffff")
def flag_store(e,val,sm,sj):
    sk=e.label(); e.i(f"s_cmp_lg_u32 s4, 0\ns_cbranch_scc1 {sk}\ns_lshl_b32 s3, s{sm}, 11\ns_add_u32 s3, s3, s{sj}\ns_lshl_b32 s3, s3, 2\ns_add_u32 s3, s3, {S_OFF+4096}\nv_mov_b32 v{T+12}, {val}\ns_mov_b64 exec, 1\nbuffer_store_dword v{T+12}, off, s[28:31], s3 sc1\ns_mov_b64 exec, -1\n{sk}:")
U=T; UB=RA+3
def poll_issue(e,track=True):
    for k in range(4):
        e.i(f"v_add_u32 v{U+2*k}, {256*k}, v{UB}")
    for k in range(4):
        t=f"buffer_load_dwordx2 v[{U+2*k}:{U+2*k+1}], v{U+2*k}, s[88:91], 0 offen sc1"
        e.vm(t,"poll") if track else e.i(t)
def poll_prep(e):
    e.i(f"v_lshrrev_b32 v{UB}, 4, v{LANE}\nv_lshlrev_b32 v{UB}, 10, v{UB}\nv_and_b32 v{U}, 15, v{LANE}\nv_lshl_add_u32 v{UB}, v{U}, 3, v{UB}")
    e.i(f"s_sub_u32 s3, s5, 16\ns_lshl_b32 s3, s3, 8\ns_lshl_b32 s74, s70, 7\ns_add_u32 s3, s3, s74\nv_add_u32 v{UB}, s3, v{UB}")
def poll_check(e):
    e.wait(vm="poll"); ok=e.label(); lp=e.label(); t=T+8
    e.i(f"s_mov_b32 s94, 0\n{lp}:\nv_max3_u32 v{t}, v{U}, v{U+1}, v{U+2}\nv_max3_u32 v{t}, v{t}, v{U+3}, v{U+4}\nv_max3_u32 v{t}, v{t}, v{U+5}, v{U+6}\nv_max_u32 v{t}, v{t}, v{U+7}")
    e.i(f"v_cmp_eq_u32 vcc, -1, v{t}\ns_add_u32 s94, s94, 1\ns_nop 3\ns_cbranch_vccz {ok}\ns_cmp_ge_u32 s94, 0x8000\ns_cbranch_scc1 {ok}\ns_sleep 1")
    poll_issue(e,False); e.i(f"s_waitcnt vmcnt(0)\ns_branch {lp}\n{ok}:")
def ssm_c(e,c,F):
    s=cmac(P(U+2),P(L128),P(U))+cmac(P(U+4),P(L128),P(U+2))+cmac(P(U+6),P(L128),P(U+4))
    s+=combine(U+6,U,U+2,L512,L1024)+cmac(P(PP),P(LP),P(U+6))
    prev=P(PP)
    for r in range(8):
        n=(AS+r,AS+8+r); s+=cmac(n,P(LAM),prev); prev=n
    wa,ra,t=T+8,T+9,T+10
    s+=f"v_and_b32 v{wa}, 15, v{LANE}\nv_lshlrev_b32 v{wa}, 6, v{wa}\nv_and_or_b32 v{wa}, v{LANE}, 48, v{wa}\ns_add_u32 s3, s71, {SCR}\nv_add_u32 v{wa}, s3, v{wa}\n"
    s+=f"v_lshrrev_b32 v{ra}, 5, v{LANE}\nv_bfe_u32 v{t}, v{LANE}, 2, 2\nv_lshl_add_u32 v{ra}, v{ra}, 3, v{t}\nv_lshlrev_b32 v{ra}, 6, v{ra}\nv_and_b32 v{t}, 1, v{LANE}\nv_lshl_add_u32 v{ra}, v{t}, 5, v{ra}\n"
    s+=f"v_and_or_b32 v{ra}, v{LANE}, 16, v{ra}\nv_and_b32 v{t}, 2, v{LANE}\nv_lshl_add_u32 v{ra}, v{t}, 2, v{ra}\ns_add_u32 s3, s71, {SCR}\nv_add_u32 v{ra}, s3, v{ra}\n"
    for k in range(4): s+=f"v_cvt_pk_bf16_f32 v{T+k}, v{AS+2*k}, v{AS+2*k+1}\n"
    for k in range(4): s+=f"v_cvt_pk_bf16_f32 v{T+4+k}, -v{AS+8+2*k}, -v{AS+9+2*k}\n"
    F.text(e,s)
    for cp in range(2): F.add(lambda cp=cp: e.ds(f"ds_write_b128 v{wa}, v[{T+4*cp}:{T+4*cp+3}] offset:{1024*cp}","tw"))
    F.add(lambda: e.wait(lg="tw"))
    for cp in range(2):
        for h in range(2): F.add(lambda cp=cp,h=h: e.ds(f"ds_read_b64_tr_b16 v[{AS+4*cp+2*h}:{AS+4*cp+2*h+1}], v{ra} offset:{1024*cp+256*h}","tr"))
    F.add(lambda: e.wait(lg="tr"))
    for cp in range(2): F.add(lambda cp=cp: (e.i(f"s_add_u32 s74, s95, {cp*32*1024}"), e.vm(f"buffer_store_dwordx4 v[{AS+4*cp}:{AS+4*cp+3}], v{L16}, s[28:31], s74 offen {c.st}","hs")))
def gate(e,c):
    skip=e.label()
    e.i(f"s_cmp_lg_u32 s6, 14\ns_cbranch_scc1 {skip}\ns_cmp_lg_u32 s70, 0\ns_cbranch_scc1 {skip}")
    e.i(f"v_lshrrev_b32 v{DW}, 5, v{LANE}\nv_lshlrev_b32 v{DW}, 4, v{DW}\nv_add_u32 v{DW}, {SCR+16384+1024}, v{DW}")
    for b in range(4):
        for k in range(8):
            if k%4==0: e.i(f"v_add_u32 v{DW+1}, s{XS[2*b+k//4]}, v{DW}")
            e.i(f"ds_read_b128 v[{FB+4*k}:{FB+4*k+3}], v{DW+1} offset:{32*(k%4)}")
        e.i("s_waitcnt lgkmcnt(0)")
        for k in range(8):
            s=8*b+k; e.i(f"v_mfma_f32_32x32x16_bf16 v[{AF}:{AF+15}], v[{FB+4*k}:{FB+4*k+3}], v[{4*s}:{4*s+3}], "+("0" if s==0 else f"v[{AF}:{AF+15}]"))
        e.i("s_nop 7")
    a=AF
    e.i(f"s_lshl_b32 s3, s5, 2\ns_add_u32 s3, s3, s7\ns_lshl_b32 s3, s3, 7\ns_add_u32 s3, s3, {G_OFF}\nv_and_b32 v{DW}, 31, v{LANE}\nv_lshlrev_b32 v{DW}, 2, v{DW}\ns_nop 15\ns_nop 3")
    e.i(f"v_cvt_pk_bf16_f32 v{a}, v{a}, v{a}\nv_lshlrev_b32 v{a}, 16, v{a}\nv_mul_f32 v{a}, {NLOG2E}, v{a}\nv_exp_f32 v{a}, v{a}\ns_nop 0\nv_add_f32 v{a}, 1.0, v{a}\nv_rcp_f32 v{a}, v{a}\ns_nop 0\nv_cvt_pk_bf16_f32 v{a}, v{a}, v{a}\nv_lshlrev_b32 v{a}, 16, v{a}")
    e.i(f"buffer_store_dword v{a}, v{DW}, s[28:31], s3 offen sc1\n{skip}:")
def p1_prologue(e,c):
    e.i("s_and_b32 s3, s2, 1\ns_lshl_b32 s3, s3, 3\ns_bfe_u32 s5, s2, 0x30003\ns_add_u32 s5, s5, s3")
    e.i("s_bfe_u32 s3, s2, 0x20001\ns_lshr_b32 s6, s2, 6\ns_lshl_b32 s6, s6, 2\ns_add_u32 s6, s6, s3")
    e.i("s_and_b32 s7, s4, 3\ns_lshr_b32 s70, s4, 2\ns_lshl_b32 s71, s4, 11\ns_lshl_b32 s72, s4, 10\ns_lshl_b32 s73, s70, 13\ns_lshl_b32 s3, s7, 10\ns_add_u32 s73, s73, s3")
    r8,p,t0,t1,t2=1,2,3,4,5
    e.i(f"v_lshrrev_b32 v{r8}, 3, v{LANE}\nv_and_b32 v{p}, 7, v{LANE}")
    for q in range(2):
        e.i(f"s_lshl_b32 s3, s4, 4\ns_add_u32 s3, s3, {8*q}\nv_add_u32 v{t0}, s3, v{r8}\nv_and_b32 v{t1}, 31, v{t0}")
        tau(e,DX+q,t1,t2)
        e.i(f"v_and_b32 v{t1}, 0x60, v{t0}\nv_add_u32 v{DX+q}, v{DX+q}, v{t1}\ns_lshl_b32 s3, s5, 7\nv_add_u32 v{DX+q}, s3, v{DX+q}\nv_bfe_u32 v{t0}, v{t0}, 1, 3\nv_xor_b32 v{t0}, v{t0}, v{p}\nv_lshlrev_b32 v{t0}, 4, v{t0}\nv_lshl_add_u32 v{DX+q}, v{DX+q}, 10, v{t0}")
        if q: e.i(f"v_subrev_u32 v{DX+1}, 1024, v{DX+1}")
    e.i(f"s_lshl_b32 s3, s4, 3\nv_add_u32 v{t0}, s3, v{r8}\nv_mul_u32_u24 v{t0}, 3584, v{t0}\ns_lshl_b32 s3, s6, 8\nv_add_u32 v{t0}, s3, v{t0}\nv_and_b32 v{t1}, 2, v{r8}\nv_xor_b32 v{t1}, v{t1}, v{p}")
    e.i(f"v_lshl_add_u32 v{DW}, v{t1}, 4, v{t0}\nv_xor_b32 v{t1}, 4, v{t1}\nv_lshl_add_u32 v{DW+1}, v{t1}, 4, v{t0}")
    e.i("s_waitcnt lgkmcnt(0)")
    srd(e,8,36,2048*1024); srd(e,12,56,512*3584); srd(e,16,58,512*3584+1024); e.i("s_sub_u32 s16, s16, 1024\ns_subb_u32 s17, s17, 0"); srd(e,28,68,WS_SIZE); srd(e,32,68,WS_SIZE)
    e.i(f"s_cmp_lt_u32 s6, 14\ns_cselect_b32 s14, s14, 0\ns_cselect_b32 s18, s18, 0\ns_cselect_b32 s34, s34, 0")
    srd(e,88,68,4096); e.i(f"s_lshl_b32 s3, s6, 13\ns_add_u32 s3, s3, {S_OFF}\ns_add_u32 s88, s88, s3\ns_addc_u32 s89, s89, 0")
    stamp(e,c,0,True); stamp(e,c,1)
    e.i(f"s_lshl_b32 s3, s6, 1\ns_add_u32 s3, s3, s70\ns_lshl_b32 s3, s3, 5\nv_and_b32 v{t0}, 15, v{LANE}\nv_lshl_add_u32 v{t0}, v{t0}, 1, s3")
    for k,pp in enumerate((38,40,50)): e.vm(f"global_load_ushort v{T+k}, v{t0}, s[{pp}:{pp+1}]","c")
    srd(e,20,42,512*1024); srd(e,24,44,512*1024)
    e.i("s_lshr_b32 s97, s6, 2\ns_lshl_b32 s97, s97, 1\ns_add_u32 s97, s97, s5" if c.rot else "s_mov_b32 s97, 0")
    for k in range(8): e.i(f"s_add_u32 s3, s97, {k}\ns_and_b32 s3, s3, 7\ns_lshl_b32 s{XS[k]}, s3, 7\ns_mul_i32 s{WT[k]}, s3, {64*3584}")
    for k in range(4): e.i(f"s_cmp_eq_u32 s70, 0\ns_cselect_b32 s{98+k}, s{XS[4*(k>>1)+(k&1)]}, s{XS[4*(k>>1)+2+(k&1)]}")
    stamp(e,c,20)
    for s in range(c.pre):
        for f in p1_dmas(e,s): f()
        if s==0:
            sk=e.label()
            e.i(f"s_cmp_lg_u32 s6, 15\ns_cbranch_scc1 {sk}\ns_cmp_ge_u32 s4, 5\ns_cbranch_scc1 {sk}\ns_lshl_b32 s3, s5, 13\ns_add_u32 s3, s3, s72\ns_add_u32 s3, s3, {S_OFF}")
            e.i(f"v_mov_b32 v8, -1\nv_mov_b32 v9, -1\nv_mov_b32 v10, -1\nv_mov_b32 v11, -1\nbuffer_store_dwordx4 v[8:11], v{L16}, s[28:31], s3 offen sc1\ns_waitcnt vmcnt(0)\n{sk}:")
            sk=e.label()
            e.i(f"s_cmp_lg_u32 s6, 14\ns_cbranch_scc1 {sk}\ns_cmp_lg_u32 s4, 0\ns_cbranch_scc1 {sk}\ns_mov_b32 m0, {SCR+16384+1024}\ns_nop 0\nglobal_load_lds_dwordx4 v{L16}, s[62:63]\n{sk}:")
        if c.ibar and s<c.pre-1: e.i("s_barrier")
        stamp(e,c,21+s)
    e.i(f"s_lshl_b32 s3, s7, 3\nv_add_u32 v{t0}, s3, v{r8}\nv_bfe_u32 v{t1}, v{t0}, 1, 3\nv_xor_b32 v{t1}, v{t1}, v{p}\ns_lshl_b32 s3, s6, 5\nv_add_u32 v{t0}, s3, v{t0}\nv_lshlrev_b32 v{t0}, 10, v{t0}\nv_lshl_add_u32 v{DB}, v{t1}, 4, v{t0}")
    e.i(f"v_and_b32 v{t0}, 31, v{LANE}\nv_lshrrev_b32 v{t1}, 5, v{LANE}\nv_bfe_u32 v{t2}, v{t0}, 1, 3\nv_xor_b32 v{t1}, v{t1}, v{t2}\ns_lshl_b32 s3, s7, 12\nv_lshl_add_u32 v{t0}, v{t0}, 7, s3\nv_lshl_add_u32 v{RA}, v{t1}, 4, v{t0}")
    for k in range(1,4): e.i(f"v_xor_b32 v{RA+k}, {32*k}, v{RA}")
    e.i(f"v_lshrrev_b32 v{t0}, 5, v{LANE}\nv_bfe_u32 v{t1}, v{LANE}, 2, 2\nv_lshl_add_u32 v{t0}, v{t0}, 4, v{t1}\nv_lshlrev_b32 v{t0}, 7, v{t0}\nv_and_b32 v{t1}, 3, v{LANE}\nv_lshl_add_u32 v{t0}, v{t1}, 3, v{t0}")
    e.i(f"v_bfe_u32 v{t1}, v{LANE}, 4, 1\nv_lshl_add_u32 v{t0}, v{t1}, 10, v{t0}\nv_bfe_u32 v{t1}, v{LANE}, 3, 2\ns_lshl_b32 s3, s70, 1\nv_xor_b32 v{t1}, s3, v{t1}\nv_lshl_add_u32 v{t0}, v{t1}, 5, v{t0}\nv_add_u32 v{RW}, 0x10000, v{t0}\nv_xor_b32 v{RW+1}, 32, v{RW}")
    e.i(f"s_lshl_b32 s3, s5, 2\ns_add_u32 s3, s3, s7\ns_mul_i32 s95, s3, {176*1024}\ns_lshl_b32 s3, s6, 13\ns_add_u32 s75, s95, s3\ns_lshl_b32 s3, s70, 11\ns_add_u32 s75, s75, s3")
    e.i(f"s_lshl_b32 s3, s6, 1\ns_add_u32 s3, s3, s70\ns_add_u32 s3, s3, 112\ns_lshl_b32 s3, s3, 10\ns_add_u32 s95, s95, s3")
    e.i(f"s_mov_b32 s76, 0xffff0000\ns_mov_b32 s77, 0xffff0000\ns_mov_b32 s78, 0\ns_mov_b32 s79, 0xffff\ns_mov_b32 s80, 0\ns_mov_b32 s81, 0xffff0000")
    for k in range(3): e.i(f"s_cmp_eq_u32 s7, {k+1}\ns_cselect_b64 s[{82+2*k}:{83+2*k}], -1, 0")
    e.i(f"v_and_b32 v{SA}, 15, v{LANE}\ns_lshl_b32 s3, s4, 7\ns_add_u32 s3, s3, {SCR+16384}\nv_lshl_add_u32 v{SA}, v{SA}, 3, s3")
    groups=[]
    for s in range(14):
        sl=(s%4)*16384
        for gi in range(2 if s<8 else 4):
            b=FB+16*(len(groups)&1); rd=[]; mf=[]
            if s<8 or s>=10:
                for kk in range(2):
                    sp=2*gi+kk; ks=(4*s if s<8 else 8*(s-10))+sp
                    if s<8: rd.append(f"ds_read_b128 v[{4*ks}:{4*ks+3}], v{RA+sp} offset:{sl}")
                    for t in range(2):
                        f=b+8*kk+4*t
                        for h in range(2): rd.append(f"ds_read_b64_tr_b16 v[{f+2*h}:{f+2*h+1}], v{RW+t} offset:{sl+((32 if s<8 else 16)*sp+4*h)*128}")
                        a=AF+16*t; mf.append(f"v_mfma_f32_32x32x16_bf16 v[{a}:{a+15}], v[{f}:{f+3}], v[{4*ks}:{4*ks+3}], "+("0" if ks==0 else f"v[{a}:{a+15}]"))
            else:
                for kk in range(4):
                    ks=16*(s-8)+4*gi+kk; f=b+4*kk
                    rd.append(f"ds_read_b128 v[{f}:{f+3}], v{RA+kk} offset:{sl+gi*4096}")
                    mf.append(f"v_mfma_f32_32x32x16_bf16 v[{AS}:{AS+15}], v[{4*ks}:{4*ks+3}], v[{f}:{f+3}], "+("0" if ks==0 else f"v[{AS}:{AS+15}]"))
            groups.append((s,gi,rd,mf))
    return groups
```

```python
from gen1 import *
from gen2 import kinfo,KN,kdesc,khead
AC=0; HE=64; HB=128; NH=6; BF=176; VW=DB; VW1=T+11; VC=193; VH1=195; RT=196; RC=202; GV=206; WA=222; FLV=RA+2; FLA=RA+3
TA=[38,39,40,41,42,43,44]; TS=[76,77,78,79]
BS=[32768,98304,49152,114688,147456,0,65536,16384,81920,131072,32768,98304,49152,114688]
CR=[(0,1),(2,3)]
def setup_early(e,c):
    e.i("s_and_b32 s98, s2, 7\ns_lshl_b32 s98, s98, 2\ns_lshr_b32 s3, s2, 6\ns_add_u32 s98, s98, s3\ns_bfe_u32 s99, s2, 0x30003")
    if getattr(c,"nx",0): e.i(f"s_xor_b32 s99, s99, {c.nx}")
    e.i("s_lshl_b32 s3, s3, 1\ns_add_u32 s3, s3, s99\ns_cmp_ge_u32 s3, 7\ns_cselect_b32 s74, 7, 0\ns_sub_u32 s3, s3, s74" if c.rot2 else "s_mov_b32 s3, 0")
    e.i(f"s_lshl_b32 s{TA[0]}, s3, 13")
    for a in range(1,7): e.i(f"s_add_u32 s3, s{TA[a-1]}, 8192\ns_cmp_ge_u32 s3, {7*8192}\ns_cselect_b32 s{TA[a]}, 0, s3")
    e.i("s_mul_i32 s3, s70, 56\ns_add_u32 s3, s3, s7\ns_lshl_b32 s96, s3, 14\ns_add_u32 s97, s96, 65536\ns_lshl_b32 s3, s3, 10")
    e.i(f"s_mul_i32 s73, s98, {2*176*1024}\ns_add_u32 s100, s73, s3\ns_add_u32 s101, s100, 4096\ns_lshr_b32 s45, s98, 1\ns_lshl_b32 s45, s45, 13\ns_add_u32 s45, s45, {S_OFF+4096}")
    srd(e,8,60,1792*1024)
    t0,t1=T+10,T+12
    e.i(f"v_lshrrev_b32 v{t1}, 3, v{LANE}\nv_and_b32 v{t0}, 2, v{t1}\nv_lshlrev_b32 v{t0}, 1, v{t0}\nv_xor_b32 v{t0}, v{t0}, v{LANE}\nv_and_b32 v{t0}, 7, v{t0}\ns_lshl_b32 s3, s99, 7\nv_lshl_add_u32 v{t0}, v{t0}, 4, s3\nv_lshl_add_u32 v{VW}, v{t1}, 10, v{t0}\nv_add_u32 v{VW1}, 7168, v{VW}")
def bdma_f(e,n):
    _,a,G=kinfo(n)
    return [DM(e,f"s_add_u32 m0, s71, {BS[n]}\ns_lshl4_add_u32 s74, s{TA[a]}, s{96+G}",ldl(VW,8,74),("b",n)),DM(e,f"s_lshl4_add_u32 s74, s{TA[a]}, s{96+G}",ldl(VW1,8,74,1024),("b",n))]
def bdma_s(e,b,nt):
    return [DM(e,(f"s_add_u32 m0, s71, {(q>>1)*65536+CR[b][nt]*16384}\n" if q%2==0 else "")+f"s_add_u32 s74, s{82+b}, {(4*nt+q)*8192-1024*(q&1)}",ldl(VC+(q&1),20,74,1024*(q&1)),("b",14+4*b)) for q in range(4)]
def late(e,s):
    L=[]
    for n in {11:(0,1),12:(2,3),13:(5,6,4),14:(7,8),15:(9,)}[s]: L+=bdma_f(e,n)
    return L
def hreg(n): return HE+8*n if n<7 else HB+8*((n-7)%NH)
def hload(e,c,n,mts=(0,1)):
    k,a,b=kinfo(n); hb=hreg(n)
    e.i(f"s_add_u32 s74, s{100+b}, s{TA[a]}" if k=="f" else f"s_add_u32 s74, s{80+a}, s{TS[b]}")
    for mt in mts: e.vm(f"buffer_load_dwordx4 v[{hb+4*mt}:{hb+4*mt+3}], v{VH1 if mt else L16}, s[28:31], s74 offen {c.ld}",("h2",n))
def fl_load(): return f"v_and_b32 v{FLV}, 15, v{LANE}\nv_lshlrev_b32 v{FLV}, 2, v{FLV}\nbuffer_load_dword v{FLV}, v{FLV}, s[28:31], s45 offen sc1"
def fl_issue(e,first=True):
    e.vm(fl_load(),"fl")
def fl_check(e,stage): e.wait(vm="fl"); spin(e,FLV,fl_load(),f"v_cmp_gt_i32 vcc, {stage}, v{FLV}","0x3fff" if stage<3 else "0xffff")
def after_mfma(e,c):
    e.i(f"v_add_u32 v{VH1}, {176*1024}, v{L16}")
    fl_check(e,1)
    for n in range(c.hearly): hload(e,c,n)
    c.LQ=Fill()
    for n in range(c.hearly,7):
        for mt in range(2): c.LQ.add(lambda n=n,mt=mt: hload(e,c,n,(mt,)))
    for f in late(e,14): c.LQ.add(f)
def after_epi(e,c):
    if c.fbar<0:
        c.LQ.run(c.pb); e.wait(vm="hs"); e.wait(vm=("h",1)); e.i("s_barrier"); flag_store(e,2,5,6); stamp(e,c,33)
    c.LQ.flush()
    for f in late(e,15): f()
def setup_late(e,c):
    e.i("s_and_b32 s3, s4, 1\ns_cmp_eq_u32 s3, 1"); e.i("s_cselect_b32 s20, s48, s46\ns_cselect_b32 s21, s49, s47\ns_mov_b32 s22, 0x80000\ns_mov_b32 s23, 0x20000")
    e.i("s_lshl_b32 s3, s3, 5\ns_add_u32 s3, s3, 112\ns_lshr_b32 s82, s4, 1\ns_lshl_b32 s74, s82, 2\ns_add_u32 s3, s3, s74\ns_lshl_b32 s3, s3, 10\ns_add_u32 s80, s73, s3\ns_lshl_b32 s82, s82, 7")
    e.i("s_lshr_b32 s3, s99, 2\ns_xor_b32 s3, s3, s98\ns_and_b32 s3, s3, 1" if c.rot2 else "s_mov_b32 s3, 0")
    e.i("s_lshl_b32 s74, s3, 14\ns_xor_b32 s81, s74, 0x4000\ns_add_u32 s81, s81, s80\ns_add_u32 s80, s80, s74\ns_lshl_b32 s74, s3, 9\ns_xor_b32 s83, s74, 0x200\ns_add_u32 s83, s83, s82\ns_add_u32 s82, s82, s74")
    r8,t0,t1,t2=T,T+2,T+3,T+4
    e.i(f"v_lshrrev_b32 v{r8}, 3, v{LANE}\nv_lshrrev_b32 v{t0}, 4, v{LANE}\nv_xor_b32 v{t0}, v{t0}, v{LANE}\nv_and_b32 v{t0}, 7, v{t0}\ns_lshl_b32 s3, s99, 16\nv_lshl_add_u32 v{t0}, v{t0}, 4, s3\nv_lshl_add_u32 v{VC}, v{r8}, 10, v{t0}\nv_xor_b32 v{VC+1}, 64, v{VC}")
    e.i(f"v_lshrrev_b32 v{t0}, 5, v{LANE}\nv_bfe_u32 v{t1}, v{LANE}, 2, 2\nv_lshl_add_u32 v{t0}, v{t0}, 2, v{t1}\nv_lshl_add_u32 v{t0}, v{t0}, 7, s71\nv_bfe_u32 v{t1}, v{LANE}, 3, 1\nv_lshl_add_u32 v{t0}, v{t1}, 6, v{t0}")
    e.i(f"v_bfe_u32 v{t1}, v{LANE}, 4, 1\nv_lshl_add_u32 v{t0}, v{t1}, 5, v{t0}\nv_and_b32 v{t1}, 3, v{LANE}\nv_lshl_add_u32 v{RT}, v{t1}, 3, v{t0}\nv_xor_b32 v{RT+1}, 64, v{RT}")
    for k in range(2,6): e.i(f"v_add_u32 v{RT+k}, 0x10000, v{RT+k-2}")
def setup_late2(e,c):
    t0,t1,t2=T+2,T+3,T+4
    e.i(f"v_and_b32 v{t0}, 15, v{LANE}\nv_lshrrev_b32 v{t1}, 5, v{LANE}\nv_lshrrev_b32 v{t2}, 1, v{t0}\nv_xor_b32 v{t2}, v{t1}, v{t2}\nv_lshl_add_u32 v{t0}, v{t0}, 7, s71\nv_lshl_add_u32 v{t0}, v{t2}, 4, v{t0}\nv_bfe_u32 v{t2}, v{LANE}, 4, 1\nv_lshl_add_u32 v{t0}, v{t2}, 16, v{t0}")
    for k in range(4):
        e.i((f"s_add_u32 s3, s99, {k}\ns_and_b32 s3, s3, 3" if c.rot2 else f"s_mov_b32 s3, {k}")+f"\ns_lshl_b32 s{TS[k]}, s3, 10\ns_lshl_b32 s3, s3, 5\nv_xor_b32 v{RC+k}, s3, v{t0}")
    e.i(f"v_and_b32 v{t2}, 7, v{LANE}\nv_xor_b32 v{t1}, v{t1}, v{t2}\nv_lshl_add_u32 v{t0}, v{t2}, 8, s71\nv_lshl_add_u32 v{t0}, v{t1}, 4, v{t0}\nv_bfe_u32 v{t2}, v{LANE}, 3, 2\nv_lshl_add_u32 v{WA}, v{t2}, 14, v{t0}")
    for k in range(1,4): e.i(f"v_xor_b32 v{WA+k}, {32*k}, v{WA}")
    for k in range(4): e.i(f"v_add_u32 v{WA+4+k}, 0x10000, v{WA+k}")
def breads(e,n):
    k,a,b=kinfo(n); bf=BF+8*(n&1)
    for nt in range(2):
        if k=="f":
            for h in range(2): e.ds(f"ds_read_b64_tr_b16 v[{bf+4*nt+2*h}:{bf+4*nt+2*h+1}], v{RT+nt+2*(BS[n]>>16)} offset:{(BS[n]&65535)+h*1024}",("br",n))
        else: e.ds(f"ds_read_b128 v[{bf+4*nt}:{bf+4*nt+3}], v{RC+b} offset:{CR[a][nt]*16384}",("br",n))
def epi_loads(e,c):
    t0,t1,t2=T,T+1,T+2
    e.i(f"v_and_b32 v{t0}, 31, v{LANE}\nv_lshlrev_b32 v{t0}, 2, v{t0}\ns_lshl_b32 s3, s98, 8\ns_add_u32 s3, s3, {G_OFF}")
    for mt in range(2): e.vm(f"buffer_load_dword v{GV+mt}, v{t0}, s[28:31], s3 offen offset:{128*mt} sc1","g")
    e.i(f"s_lshl_b32 s74, s4, 2\nv_lshrrev_b32 v{t0}, 4, v{LANE}\nv_add_u32 v{t0}, s74, v{t0}\nv_lshlrev_b32 v{t1}, 2, v{t0}")
    for mt in range(2): e.vm(f"buffer_load_dword v{GV+2+mt}, v{t1}, s[28:31], s3 offen offset:{128*mt} sc1","g")
    tau(e,t1,t0,t2)
    e.i(f"s_lshl_b32 s3, s98, 6\nv_add_u32 v{t1}, s3, v{t1}\nv_and_b32 v{t2}, 15, v{LANE}\ns_lshl_b32 s3, s99, 4\nv_add_u32 v{T+3}, s3, v{t2}\nv_lshlrev_b32 v{T+3}, 3, v{T+3}\nv_lshl_add_u32 v{t1}, v{t1}, 10, v{T+3}")
    e.vm(f"global_load_dwordx2 v[{T+4}:{T+5}], v{T+3}, s[52:53]","g")
    e.vm(f"global_load_dwordx2 v[{T+6}:{T+7}], v{t1}, s[36:37]","g")
    e.i(f"v_add_u32 v{T+3}, 0x8000, v{t1}")
    e.vm(f"global_load_dwordx2 v[{T+8}:{T+9}], v{T+3}, s[36:37]","g")
    e.i(f"v_lshlrev_b32 v{GV+4}, 1, v{t1}\nv_and_b32 v{T+3}, 7, v{t0}\nv_xor_b32 v{t2}, v{t2}, v{T+3}\nv_lshlrev_b32 v{t2}, 4, v{t2}\nv_lshl_add_u32 v{t2}, v{T+3}, 8, v{t2}\nv_lshrrev_b32 v{t0}, 3, v{t0}\nv_lshl_add_u32 v{GV+5}, v{t0}, 14, v{t2}")
def phase2(e,c):
    setup_late(e,c)
    e.wait(vm=("b",0)); breads(e,0); setup_late2(e,c); stamp(e,c,32)
    for n in range(22):
        k,a,b=kinfo(n)
        if n+1<22: e.wait(vm=("b",n+1)); breads(e,n+1)
        e.wait(lg=("br",n),vm=("h2",n))
        q={1:lambda: bdma_f(e,10)+bdma_f(e,11),3:lambda: bdma_f(e,12)+bdma_f(e,13),6:lambda: bdma_s(e,0,0),8:lambda: bdma_s(e,0,1),11:lambda: bdma_s(e,1,0),13:lambda: bdma_s(e,1,1)}.get(n,lambda: [])()
        bf=BF+8*(n&1); hb=hreg(n)
        for nt in range(2):
            for mt in range(2):
                a0=AC+(0 if k=="f" else 64)+(2*nt+mt)*16
                e.i(f"v_mfma_f32_32x32x16_bf16 v[{a0}:{a0+15}], v[{bf+4*nt}:{bf+4*nt+3}], v[{hb+4*mt}:{hb+4*mt+3}], "+("0" if n in (0,14) else f"v[{a0}:{a0+15}]"))
                if q: q.pop(0)()
        if n==c.fbar:
            e.wait(vm="hs"); e.wait(vm=("h",1)); e.i("s_barrier"); flag_store(e,2,5,6); stamp(e,c,33)
        if n==c.fiss: fl_issue(e,False)
        if n==c.fchk:
            fl_check(e,2); stamp(e,c,34)
            for n2 in range(7,7+NH): hload(e,c,n2)
        if n>=7 and n+NH<22: hload(e,c,n+NH)
        if n==16: epi_loads(e,c)
        if n==13: stamp(e,c,37)
    stamp(e,c,35)
    e.wait(vm="g")
    for mt in range(2): e.i(f"v_sub_f32 v{T+mt}, 1.0, v{GV+mt}\nv_cvt_pk_bf16_f32 v{T+mt}, v{T+mt}, v{T+mt}\nv_lshlrev_b32 v{T+mt}, 16, v{T+mt}")
    for i in range(4):
        for r in range(16): e.i(f"v_mul_f32 v{AC+16*i+r}, v{T+(i&1)}, v{AC+16*i+r}")
    for i in range(4):
        nt,mt=i>>1,i&1
        for qq in range(4):
            for r in range(4): e.i(f"v_fmac_f32 v{AC+16*i+4*qq+r}, v{GV+mt}, v{AC+64+16*i+4*qq+r}")
            e.ds(f"ds_write_b128 v{WA+4*mt+qq}, v[{AC+16*i+4*qq}:{AC+16*i+4*qq+3}] offset:{nt*128}","rw")
    for cc in range(2):
        xs=T+6+2*cc; o=HB+4*cc
        for k in range(2):
            e.i(f"v_lshlrev_b32 v{T}, 16, v{xs+k}\nv_lshlrev_b32 v{T+1}, 16, v{T+4+k}\nv_and_b32 v{T+2}, 0xffff0000, v{xs+k}\nv_and_b32 v{T+3}, 0xffff0000, v{T+4+k}\nv_mul_f32 v{T}, v{T}, v{T+1}\nv_mul_f32 v{T+2}, v{T+2}, v{T+3}\nv_cvt_pk_bf16_f32 v{T}, v{T}, v{T+2}")
            e.i(f"v_lshlrev_b32 v{o+2*k}, 16, v{T}\nv_and_b32 v{o+2*k+1}, 0xffff0000, v{T}\nv_mul_f32 v{o+2*k}, v{o+2*k}, v{GV+2+cc}\nv_mul_f32 v{o+2*k+1}, v{o+2*k+1}, v{GV+2+cc}")
    e.i(f"v_add_u32 v{T}, 0x10000, v{GV+5}")
    srd(e,24,64,2048*2048)
    e.wait(lg="*"); e.i("s_barrier"); stamp(e,c,36)
    for cc in range(2):
        for p in range(8): e.ds(f"ds_read_b128 v[{32*cc+4*p}:{32*cc+4*p+3}], v{T if cc else GV+5} offset:{p*2048}",("rr",cc,p))
    for cc in range(2):
        o=HB+4*cc
        for p in range(8):
            e.wait(lg=("rr",cc,p))
            for r in range(4): e.i(f"v_add_f32 v{o+r}, v{o+r}, v{32*cc+4*p+r}")
        e.i(f"s_mov_b32 s3, {cc*65536}")
        e.vm(f"buffer_store_dwordx4 v[{o}:{o+3}], v{GV+4}, s[24:27], s3 offen {c.ost}")
def gen(c):
    c.merged=1; c.late=late; c.setup_early=lambda e: setup_early(e,c); c.fl_issue=fl_issue; c.after_mfma=lambda e: after_mfma(e,c); c.after_epi=lambda e: after_epi(e,c)
    e=E(); common_prologue(e,c)
    phase1(e,c,lambda e: (phase2(e,c), prof_end(e,c,0), dbg_time(e,c), e.i("Lexit:\ns_endpgm")))
    hdr=open("cdna_kernels/"+KN+".s.ref").read().split("; Override")[0]
    n=KN+"_kernel"
    return hdr+"; @launch grid=(256,1,1) block=(512,1,1) lds=163840\n"+'.amdgcn_target "amdgcn-amd-amdhsa--gfx950"\n.text\n'+khead(n)+"\n".join(e.L)+'\n.section .rodata,"a"\n'+kdesc(n)
if __name__=="__main__":
    import sys
    c=Cfg(); c.ld="sc1"; c.rot2=1; c.fbar=-1; c.pb=2; c.hearly=1; c.fiss=4; c.fchk=6; c.ost=""
    for a in sys.argv[2:]:
        k,v=a.split("="); setattr(c,k,int(v) if v.lstrip("-").isdigit() else v)
    open(sys.argv[1],"w").write(gen(c))
```

```python
from gen1 import *
import gen3
from gen3 import kinfo,KN,kdesc,khead,TA,TS,BS,CR,setup_early,bdma_f,bdma_s,fl_load,fl_issue,fl_check,VW,VC,FLV,FLA
ACF=64; ACS=0; HB=128; VH1=214; RT0=215; RTT=216; RC=202; GV=206; WA=222
def mf(a,A,B,z): return f"v_mfma_f32_32x32x16_bf16 v[{a}:{a+15}], v[{A}:{A+3}], v[{B}:{B+3}], "+("0" if z else f"v[{a}:{a+15}]")
def hreg(c,n): return 8*n if n<7 else HB+8*((n-7)%c.nh)
def hload(e,c,n,mts=(0,1)):
    k,a,b=kinfo(n); hb=hreg(c,n)
    e.i(f"s_add_u32 s74, s{100+b}, s{TA[a]}" if k=="f" else f"s_add_u32 s74, s{80+a}, s{TS[b]}")
    for mt in mts: e.vm(f"buffer_load_dwordx4 v[{hb+4*mt}:{hb+4*mt+3}], v{VH1 if mt else L16}, s[28:31], s74 offen {c.ld}",("h2",n))
def setup_e2(e):
    t0,t1=T+10,T+12
    e.i(f"v_add_u32 v{VH1}, {176*1024}, v{L16}\nv_lshrrev_b32 v{t0}, 5, v{LANE}\nv_bfe_u32 v{t1}, v{LANE}, 2, 2\nv_lshl_add_u32 v{t0}, v{t0}, 2, v{t1}\nv_lshl_add_u32 v{t0}, v{t0}, 7, s71\nv_bfe_u32 v{t1}, v{LANE}, 3, 1\nv_lshl_add_u32 v{t0}, v{t1}, 6, v{t0}")
    e.i(f"v_bfe_u32 v{t1}, v{LANE}, 4, 1\nv_lshl_add_u32 v{t0}, v{t1}, 5, v{t0}\nv_and_b32 v{t1}, 3, v{LANE}\nv_lshl_add_u32 v{RT0}, v{t1}, 3, v{t0}")
def bread_f(n,dst):
    L=[f"v_xor_b32 v216, 64, v215",f"v_add_u32 v212, 0x10000, v215",f"v_add_u32 v213, 0x10000, v216",f"v_add_u32 v217, 0x20000, v215",f"v_add_u32 v221, 0x20000, v216"] if n==0 else []
    return L+[f"ds_read_b64_tr_b16 v[{dst+4*nt+2*h}:{dst+4*nt+2*h+1}], v{[(215,216),(212,213),(217,221)][BS[n]>>16][nt]} offset:{(BS[n]&65535)+h*1024}" for nt in range(2) for h in range(2)]
def setup_late(e,c):
    e.i("s_and_b32 s3, s4, 1\ns_cmp_eq_u32 s3, 1\ns_cselect_b32 s20, s48, s46\ns_cselect_b32 s21, s49, s47\ns_mov_b32 s22, 0x80000\ns_mov_b32 s23, 0x20000")
    e.i("s_lshl_b32 s3, s3, 5\ns_add_u32 s3, s3, 112\ns_lshr_b32 s82, s4, 1\ns_lshl_b32 s74, s82, 2\ns_add_u32 s3, s3, s74\ns_lshl_b32 s3, s3, 10\ns_add_u32 s80, s73, s3\ns_lshl_b32 s82, s82, 7")
    e.i("s_lshr_b32 s3, s99, 2\ns_xor_b32 s3, s3, s98\ns_and_b32 s3, s3, 1")
    e.i("s_lshl_b32 s74, s3, 14\ns_xor_b32 s81, s74, 0x4000\ns_add_u32 s81, s81, s80\ns_add_u32 s80, s80, s74\ns_lshl_b32 s74, s3, 9\ns_xor_b32 s83, s74, 0x200\ns_add_u32 s83, s83, s82\ns_add_u32 s82, s82, s74")
    r8,t0=T,T+2
    e.i(f"v_lshrrev_b32 v{r8}, 3, v{LANE}\nv_lshrrev_b32 v{t0}, 4, v{LANE}\nv_xor_b32 v{t0}, v{t0}, v{LANE}\nv_and_b32 v{t0}, 7, v{t0}\ns_lshl_b32 s3, s99, 16\nv_lshl_add_u32 v{t0}, v{t0}, 4, s3\nv_lshl_add_u32 v{VC}, v{r8}, 10, v{t0}\nv_xor_b32 v{VC+1}, 64, v{VC}")
def publish(e,c):
    e.wait(vm="hs"); e.wait(vm=("h",1)); e.i("s_barrier"); flag_store(e,2,5,6); stamp(e,c,33)
def g0_groups():
    G=[]
    for n in range(7):
        b=FB+16*(n&1)
        G.append((14,n,bread_f(n,b),[mf(ACF+(2*nt+mt)*16,b+4*nt,8*n+4*mt,n==0) for nt in range(2) for mt in range(2)]))
    return G
def run_groups(e,c,groups,g0,g1,F,D,pre,sync,per):
    RQ=Fill()
    def reads(g):
        s,gi=groups[g][:2]
        if s==14: RQ.add(lambda: e.wait(vm=("b",gi)))
        for r in groups[g][2]: RQ.add(lambda r=r: e.ds(r,("r",g)) if r.startswith("ds_") else e.i(r))
    if g0==0 or groups[g0-1] is None: reads(g0); RQ.flush()
    for g in range(g0,g1):
        s,gi,rd,mfs=groups[g]
        nf = g+1<g1 and groups[g+1][1]==0 and groups[g+1][0]<14
        e.wait(lg=("r",g),vm=("h2",gi) if s==14 else None)
        pre(s,gi)
        if c.prio: e.i('s_setprio 1')
        for k,m in enumerate(mfs):
            if k==(c.pre_bar if nf else 0) and g+1<g1:
                if nf: sync(groups[g+1][0])
                reads(g+1)
            dr=D.q and (s<11 or k%c.dp==0)
            if dr and hasattr(D.q[0],"pre"): D.q[0].pre()
            e.i(m); RQ.run(c.spread if k<3 else 99)
            if dr: D.run(1)
            if c.nof and 10<=s<14: F.q=[]
            if not D.q or s>=11: F.run(per(s))
            if c.prio and k==3: e.i('s_setprio 0')
def body(e,c):
    groups=p1_prologue(e,c)+g0_groups()
    F=Fill(); D=Fill(); z={}
    def sync(s):
        if s in (11+c.slow,12+c.slow): F.flush()
        if s<=11: D.flush()
        if s==11: cnt_check(e); e.wait(vm=("h",0))
        e.wait(vm=("d",s),lg="*"); e.i("s_barrier"); stamp(e,c,2+s)
        if s==0:
            sk=e.label(); e.i(f"s_cmp_lg_u32 s6, 15\ns_cbranch_scc1 {sk}\ns_cmp_lg_u32 s4, 0\ns_cbranch_scc1 {sk}\ns_lshl_b32 s3, s5, 2\nv_mov_b32 v1, s3\nv_mov_b32 v2, 1\ns_mov_b64 exec, 1\nglobal_store_dword v1, v2, s[66:67] sc1\ns_mov_b64 exec, -1\n{sk}:")
        if s==8-c.dist: e.i(f"v_add_u32 v{DW}, 128, v{DW}\nv_add_u32 v{DW+1}, 128, v{DW+1}")
        if s==8:
            a,b2=T+8,T+9
            e.i(f"v_and_b32 v{a}, 15, v{LANE}\nv_lshrrev_b32 v{b2}, 5, v{LANE}\nv_lshrrev_b32 v{RA}, 1, v{a}\nv_xor_b32 v{b2}, v{b2}, v{RA}\ns_lshl_b32 s3, s70, 11\nv_lshl_add_u32 v{a}, v{a}, 7, s3\nv_lshl_add_u32 v{a}, v{b2}, 4, v{a}\nv_bfe_u32 v{b2}, v{LANE}, 4, 1\nv_lshl_add_u32 v{RA}, v{b2}, 16, v{a}")
            for k in range(1,4): e.i(f"v_xor_b32 v{RA+k}, {32*k}, v{RA}")
            e.i(f"v_mul_u32_u24 v{b2}, {65536-1024}, v{b2}\nv_subrev_u32 v{b2}, 0x10000, v{b2}\nv_lshrrev_b32 v{a}, 5, v{LANE}\nv_lshlrev_b32 v{a}, 10, v{a}\nv_sub_u32 v{b2}, v{b2}, v{a}\nv_add_u32 v{RW}, v{RW}, v{b2}\nv_add_u32 v{RW+1}, v{RW+1}, v{b2}")
        if s==11: flag_store(e,1,5,6); setup_e2(e)
        for s2 in ([s+c.dist] if s else range(c.pre,c.dist+1)):
            for f in ([] if s2>13 else p1_dmas(e,s2)): D.add(f)
        for w in range(8):
            if c.ta>=0 and s==c.ta+[1,1,0,0,3,4,5,5][w]: D.add(lambda w=w: touch1(e,w,*TCH_A[w]))
            if c.tb>=0 and s==c.tb+(w>>2): D.add(lambda w=w: touch1(e,w,*TCH_B[w]))
        if s>=11:
            for n in {11:(0,1),12:(2,3),13:(4,5,6)}[s]:
                for f in bdma_f(e,n): D.add(f)
    def hq(n0,n1):
        for n in range(n0,n1):
            D.add(lambda n=n: hload(e,c,n))
    def pre(s,gi):
        if (s,gi)==(8,1): ffn_epi(e,c,F,0)
        if (s,gi)==(9,0): cnt_issue(e)
        if (s,gi)==(10,0):
            F.flush(); z["st"]=e.state(); e.i("s_cmp_ge_u32 s6, 14\ns_cbranch_scc1 Lzpath"); setup_early(e,c)
        if (s,gi)==(10,1): ssm_a(e,F)
        if (s,gi)==(11+c.slow,0): ssm_b(e,F)
        if (s,gi)==(c.fi//4,c.fi%4): D.add(lambda: fl_issue(e,2))
        if (s,gi)==(c.fc//4,c.fc%4): D.add(lambda: fl_check(e,1)); hq(0,7)
        if (s,gi)==(13,0): F.add(lambda: poll_prep(e))
        if (s,gi)==(13,3): F.add(lambda: poll_issue(e))
        if (s,gi)==(14,0):
            stamp(e,c,16); D.flush(); F.flush(); e.wait(vm=("h2",0)); e.i("s_barrier"); stamp(e,c,24)
            for f in bdma_f(e,7)+bdma_f(e,8): D.add(f)
        if (s,gi)==(14,2):
            for f in bdma_f(e,10)+bdma_f(e,11): D.add(f)
        if (s,gi)==(14,c.eg):
            if c.eg==0: e.i("s_nop 7")
            ffn_epi(e,c,F,1,c.pk); F.add(lambda: (stamp(e,c,17),poll_check(e))); ssm_c(e,c,F)
            F.add(lambda: D.q.extend(bdma_f(e,9)))
            if c.pk:
                while F.q: F.run(12); D.run(1)
                stamp(e,c,19)
        if (s,gi)==(14,4):
            for f in bdma_f(e,12)+bdma_f(e,13): D.add(f)
        if (s,gi)==(14,c.pg): publish(e,c)
    per=lambda s: {8:5,9:6,10:5,11:5,12:5,13:5,14:c.p14}.get(s,4)
    ssm_consts(e,F); F.flush(); sync(0)
    run_groups(e,c,groups,0,len(groups),F,D,pre,sync,per)
    F.flush(); D.flush()
    if c.pg>6: stamp(e,c,19); publish(e,c)
    e.i("Lp1end:")
    phase2(e,c); prof_end(e,c,0); dbg_time(e,c); e.i("Lexit:\ns_endpgm")
    e.restore(z["st"]); e.i("Lzpath:\ns_nop 7\ns_nop 3")
    ssm_a(e,F); F.flush(); cnt_check(e); e.wait(vm="*",lg="*"); e.i("s_barrier"); stamp(e,c,16)
    ssm_b(e,F); F.flush(); poll_prep(e); gate(e,c); stamp(e,c,17); poll_issue(e); poll_check(e); ssm_c(e,c,F); F.flush(); stamp(e,c,19)
    e.wait(vm="*",lg="*"); e.i("s_barrier"); flag_store(e,2,5,6); stamp(e,c,33)
    setup_early(e,c); setup_e2(e); fl_issue(e,2)
    for n in range(10):
        for f in bdma_f(e,n): f()
    fl_check(e,1); hq(0,7); D.flush()
    def prez(s,gi):
        if gi==2:
            for f in bdma_f(e,10)+bdma_f(e,11): D.add(f)
        if gi==4:
            for f in bdma_f(e,12)+bdma_f(e,13): D.add(f)
    run_groups(e,c,[None]+g0_groups(),1,8,F,D,prez,None,per); D.flush()
    e.wait(vm="*",lg="*"); e.i("s_branch Lp1end")
def phase2(e,c):
    stamp(e,c,40); setup_late(e,c)
    for f in bdma_s(e,0,0): f()
    stamp(e,c,41)
    for n in range(7,14):
        e.wait(vm=("b",n))
        for r in bread_f(n,8*(n-7)): e.ds(r,("br",n)) if r.startswith("ds_") else e.i(r)
        if n in (8,11,13):
            e.wait(lg=("br",n)); stamp(e,c,42+n)
            for f in bdma_s(e,*{8:(0,1),11:(1,0),13:(1,1)}[n]): f()
            stamp(e,c,43+n)
        if n==c.fiss: fl_issue(e,False)
    gen3.WA=WA; gen3.setup_late2(e,c)
    stamp(e,c,32); fl_check(e,2); stamp(e,c,34)
    for n in range(7,7+c.nh): hload(e,c,n)
    gen3.epi_loads(e,c)
    F=Fill()
    def cread(n):
        k,a,b=kinfo(n); bf=FB+8*(n&1); e.wait(vm=("b",n))
        for nt in range(2): e.ds(f"ds_read_b128 v[{bf+4*nt}:{bf+4*nt+3}], v{RC+b} offset:{CR[a][nt]*16384}",("br",n))
    for n in range(7,22):
        k,a,b=kinfo(n)
        if 14<=n+1<22: cread(n+1)
        e.wait(lg=("br",n),vm=("h2",n))
        bf=8*(n-7) if k=="f" else FB+8*(n&1); hb=hreg(c,n)
        if n==15:
            F.add(lambda: e.wait(vm="g"))
            for mt in range(2): F.text(e,f"v_sub_f32 v{T+10+mt}, 1.0, v{GV+mt}\nv_cvt_pk_bf16_f32 v{T+10+mt}, v{T+10+mt}, v{T+10+mt}\nv_lshlrev_b32 v{T+10+mt}, 16, v{T+10+mt}")
            for i in range(64): F.text(e,f"v_mul_f32 v{ACF+i}, v{T+10+((i>>4)&1)}, v{ACF+i}")
            for cc in range(2):
                xs=T+6+2*cc; o=232+4*cc
                for kk in range(2):
                    F.text(e,f"v_lshlrev_b32 v{T}, 16, v{xs+kk}\nv_lshlrev_b32 v{T+1}, 16, v{T+4+kk}\nv_and_b32 v{T+2}, 0xffff0000, v{xs+kk}\nv_and_b32 v{T+3}, 0xffff0000, v{T+4+kk}\nv_mul_f32 v{T}, v{T}, v{T+1}\nv_mul_f32 v{T+2}, v{T+2}, v{T+3}\nv_cvt_pk_bf16_f32 v{T}, v{T}, v{T+2}")
                    F.text(e,f"v_lshlrev_b32 v{o+2*kk}, 16, v{T}\nv_and_b32 v{o+2*kk+1}, 0xffff0000, v{T}\nv_mul_f32 v{o+2*kk}, v{o+2*kk}, v{GV+2+cc}\nv_mul_f32 v{o+2*kk+1}, v{o+2*kk+1}, v{GV+2+cc}")
            F.text(e,f"v_add_u32 v{T}, 0x10000, v{GV+5}")
        for nt in range(2):
            for mt in range(2):
                e.i(mf((ACF if k=="f" else ACS)+(2*nt+mt)*16,bf+4*nt,hb+4*mt,n==14)); F.run(5)
        if n+c.nh<22: hload(e,c,n+c.nh)
        if n==13: stamp(e,c,37)
    F.flush(); srd(e,24,64,2048*2048); stamp(e,c,35); e.i("s_nop 7")
    for i in range(4):
        nt,mt=i>>1,i&1
        for qq in range(4):
            for r in (0,2): x=16*i+4*qq+r; e.i(f"v_pk_fma_f32 v[{ACF+x}:{ACF+x+1}], v[{GV}:{GV+1}], v[{ACS+x}:{ACS+x+1}], v[{ACF+x}:{ACF+x+1}] op_sel:[{mt},0,0] op_sel_hi:[{mt},1,1]")
            e.ds(f"ds_write_b128 v{WA+4*mt+qq}, v[{ACF+16*i+4*qq}:{ACF+16*i+4*qq+3}] offset:{nt*128}","rw")
    e.wait(lg="*"); e.i("s_barrier"); stamp(e,c,36)
    for cc in range(2):
        for p in range(8): e.ds(f"ds_read_b128 v[{32*cc+4*p}:{32*cc+4*p+3}], v{T if cc else GV+5} offset:{p*2048}",("rr",cc,p))
    for cc in range(2):
        o=232+4*cc
        for p in range(8):
            e.wait(lg=("rr",cc,p))
            for r in (0,2): e.i(f"v_pk_add_f32 v[{o+r}:{o+r+1}], v[{o+r}:{o+r+1}], v[{32*cc+4*p+r}:{32*cc+4*p+r+1}]")
        e.i(f"s_mov_b32 s3, {cc*65536}")
        e.vm(f"buffer_store_dwordx4 v[{o}:{o+3}], v{GV+4}, s[24:27], s3 offen {c.ost}")
def gen(c):
    e=E(); common_prologue(e,c); body(e,c)
    hdr=open("cdna_kernels/"+KN+".s.ref").read().split("; Override")[0]
    n=KN+"_kernel"
    return hdr+"; @launch grid=(256,1,1) block=(512,1,1) lds=163840\n"+'.amdgcn_target "amdgcn-amd-amdhsa--gfx950"\n.text\n'+khead(n)+"\n".join(e.L)+'\n.section .rodata,"a"\n'+kdesc(n)
if __name__=="__main__":
    import sys
    c=Cfg(); c.merged=1; c.ld="sc1"; c.rot2=1; c.fiss=11; c.ost=""; c.nh=6; c.ta=1; c.tb=-1; c.dp=1; c.fi=4*11+3; c.fc=4*12+1; c.p14=8; c.eg=2; c.pg=5; c.pk=1; c.nod=0; c.nof=0; c.prio=0
    for a in sys.argv[2:]:
        k,v=a.split("="); setattr(c,k,int(v) if v.lstrip("-").isdigit() else v)
    open(sys.argv[1],"w").write(gen(c))
```

```python
from emit import *
S_OFF=0xC20000; G_OFF=0xC10000; PROF=0xD00000; WS_SIZE=0xE00000
SCR=131072
LOG2E="0x3fb8aa3b"; NLOG2E="0xbfb8aa3b"
X=0; AF=128; AS=160; FB=176; RA=208; RW=212; DX=214; DW=216; DB=218; L16=219; LANE=220; SA=221
LAM=222; L8=224; L16P=226; L32=228; L128=230; L512=232; L1024=234; LQ=236; LP=238; CO=240; T=242; PV=255
class Cfg:
    prof=0; pre_bar=1; merged=0; st="sc1"; nodma=0; nofill=0; noread=0; nomfma=0; few=0; noatom=0; spread=4; rot=1; leak=-1; rt=1; tl='xxxxxxxx'; tas='22006788'; ibar=0; ta=-1; tb=-1; tz=0; tzs=1; znt=0; slow=1; lpace=14; cin=0; hearly=7; dbgt=0; dist=3; pre=2
def stamp(e,c,idx,real=False):
    if c.leak>=0:
        if idx in (0,c.leak): e.i('s_memrealtime s[92:93]'); e.wait(lg='*'); e.i(f'v_writelane_b32 v{PV}, s92, {1 if idx else 0}')
        return
    if not c.prof and not (c.dbgt and idx<2): return
    if c.few==3 and 32<=idx<62: pass
    elif c.few>=2 and idx not in (0,1,2,10,12,16,24,19,33,34,35,36,62,63): return
    elif c.few and idx not in (0,1,2,3,6,10,12,13,14,15,16,17,18,19,24,32,33,34,35,36,37,62,63): return
    e.i(f"{'s_memrealtime' if real or c.rt else 's_memtime'} s[92:93]"); e.wait(lg="*"); e.i(f"v_writelane_b32 v{PV}, s92, {idx}")
def prof_end(e,c,kid):
    if not c.prof: return
    stamp(e,c,62); stamp(e,c,63,True)
    e.i(f"s_lshl_b32 s92, s2, 3\ns_add_u32 s92, s92, s4\ns_lshl_b32 s92, s92, 8\ns_add_u32 s92, s92, {PROF+kid*0x80000}")
    e.i(f"v_mbcnt_lo_u32_b32 v254, -1, 0\nv_mbcnt_hi_u32_b32 v254, -1, v254\nv_lshlrev_b32 v254, 2, v254")
    e.vm(f"buffer_store_dword v{PV}, v254, s[28:31], s92 offen")
def srd(e,d,p,n):
    e.i(f"s_mov_b32 s{d}, s{p}\ns_mov_b32 s{d+1}, s{p+1}\ns_mov_b32 s{d+2}, {n}\ns_mov_b32 s{d+3}, 0x20000")
def tau(e,d,s,t):
    e.i(f"v_and_b32 v{d}, 4, v{s}\nv_lshlrev_b32 v{d}, 2, v{d}\nv_and_or_b32 v{d}, v{s}, 3, v{d}\nv_lshrrev_b32 v{t}, 3, v{s}\nv_lshl_or_b32 v{d}, v{t}, 2, v{d}")
def cmac(d,a,b):
    return f"v_fmac_f32 v{d[0]}, v{a[0]}, v{b[0]}\nv_fmac_f32 v{d[1]}, v{a[0]}, v{b[1]}\nv_fma_f32 v{d[0]}, -v{a[1]}, v{b[1]}, v{d[0]}\nv_fmac_f32 v{d[1]}, v{a[1]}, v{b[0]}\n"
def P(x): return (x,x+1)
def csq(d,s,t): return f"v_mul_f32 v{t}, v{s+1}, v{s+1}\nv_mul_f32 v{t+1}, v{s}, v{s+1}\nv_fma_f32 v{d}, v{s}, v{s}, -v{t}\nv_add_f32 v{d+1}, v{t+1}, v{t+1}\n"
def cis(d,la,rev,t):
    return f"v_rndne_f32 v{t}, v{rev}\nv_exp_f32 v{t+1}, v{la}\nv_sub_f32 v{t}, v{rev}, v{t}\nv_cos_f32 v{d}, v{t}\nv_sin_f32 v{d+1}, v{t}\ns_nop 0\nv_mul_f32 v{d}, v{d}, v{t+1}\nv_mul_f32 v{d+1}, v{d+1}, v{t+1}\n"
def combine(ee,A,C,La,Lb):
    s=f"v_mov_b32 v{A}, v{ee}\nv_mov_b32 v{A+1}, v{ee+1}\ns_nop 1\nv_permlane16_swap_b32 v{A}, v{ee}\nv_permlane16_swap_b32 v{A+1}, v{ee+1}\ns_nop 0\n"
    s+=cmac(P(ee),P(La),P(A))
    s+=f"v_mov_b32 v{C}, v{ee}\nv_mov_b32 v{C+1}, v{ee+1}\ns_nop 1\nv_permlane32_swap_b32 v{C}, v{ee}\nv_permlane32_swap_b32 v{C+1}, v{ee+1}\ns_nop 0\n"
    s+=cmac(P(ee),P(Lb),P(C))
    return s
def dbg_time(e,c):
    if c.leak>=0:
        stamp(e,c,62); sk=e.label(); lp=e.label()
        e.i(f's_cmp_ge_u32 s2, 8\ns_cbranch_scc1 {sk}\ns_cmp_lg_u32 s4, 0\ns_cbranch_scc1 {sk}\nv_readlane_b32 s10, v255, 0\nv_readlane_b32 s11, v255, 1\ns_memrealtime s[12:13]\ns_waitcnt lgkmcnt(0)\ns_sub_u32 s10, s11, s10\ns_lshl_b32 s10, s10, 2\ns_min_u32 s10, s10, 20000\n{lp}:\ns_memrealtime s[14:15]\ns_waitcnt lgkmcnt(0)\ns_sub_u32 s14, s14, s12\ns_cmp_lt_u32 s14, s10\ns_cbranch_scc1 {lp}\n{sk}:')
    if not c.dbgt: return
    sk=e.label()
    e.i(f"s_cmp_ge_u32 s2, 16\ns_cbranch_scc1 {sk}\ns_cmp_lg_u32 s4, 0\ns_cbranch_scc1 {sk}\ns_waitcnt vmcnt(0)\ns_memrealtime s[92:93]\ns_memtime s[10:11]\ns_waitcnt lgkmcnt(0)\nv_readlane_b32 s93, v255, 0\nv_readlane_b32 s11, v255, 1\ns_nop 3\ns_sub_u32 s92, s92, s93\ns_sub_u32 s10, s10, s11\ns_cmp_ge_u32 s2, 8\ns_cselect_b32 s92, s10, s92\ns_lshl_b32 s3, s2, 2\nv_mov_b32 v1, s3\nv_mov_b32 v2, s92\ns_mov_b64 exec, 1\nglobal_store_dword v1, v2, s[66:67] sc1\n{sk}:")
TV=T+10; TJ=T+12
def touch1(e,w,p,sc,nl,kind,TV=TV):
    nx=e.label()
    e.i(f"s_cmp_lg_u32 s4, {w}\ns_cbranch_scc1 {nx}\n{sc}\nv_min_u32 v{TV}, {nl-1}, v{LANE}\nv_add_u32 v{TV}, s3, v{TV}")
    if kind=="g1": e.i(f"v_lshlrev_b32 v{TV}, 8, v{TV}\nv_add_u32 v{TV}, 128, v{TV}")
    elif kind=="lin": e.i(f"v_lshlrev_b32 v{TV}, 7, v{TV}")
    else: e.i(f"v_lshrrev_b32 v{TJ}, 9, v{TV}\nv_lshl_add_u32 v{TV}, v{TJ}, 9, v{TV}\nv_add_u32 v{TV}, {512 if kind=='w2b' else 0}, v{TV}\nv_lshlrev_b32 v{TV}, 7, v{TV}")
    e.i(f"s_mov_b32 m0, {SCR+16384+4096}\ns_nop 0\nglobal_load_lds_dword v{TV}, s[{p}:{p+1}]\n{nx}:")
_a="s_mul_i32 s3, s2, 28"; _b="s_lshl_b32 s3, s2, 4"
TCH_A=[(12,_a,28,"g1"),(16,_a+"\ns_add_u32 s3, s3, 4",28,"g1"),(20,_b,16,"lin"),(24,_b,16,"lin"),(60,_a,28,"w2a"),(60,_a,28,"w2b"),(46,_b,16,"lin"),(48,_b,16,"lin")]
_c="s_mul_i32 s3, s2, 56"
TCH_L=[(8,"s_lshl_b32 s3, s2, 6",64,"lin"),(12,_c,56,"lin"),(16,_c+"\ns_add_u32 s3, s3, 8",56,"lin"),(20,_b,16,"lin"),(24,_b,16,"lin"),(60,_c,56,"lin"),(46,_b,16,"lin"),(48,_b,16,"lin")]
TCH_B=[(60,f"s_lshr_b32 s3, s2, 3\ns_mul_i32 s3, s3, 224\ns_add_u32 s3, s3, {56*w}",56,"w2b") for w in range(4)]+[(46+2*(w>>1),f"s_lshr_b32 s3, s2, 3\ns_lshl_b32 s3, s3, 7\ns_add_u32 s3, s3, {64*(w&1)}",64,"lin") for w in range(4)]
def common_prologue(e,c):
    e.i("s_cmp_ge_u32 s2, 256\ns_cbranch_scc1 Lexit")
    e.i("s_load_dwordx16 s[36:51], s[0:1], 0\ns_load_dwordx16 s[52:67], s[0:1], 64\ns_load_dwordx2 s[68:69], s[0:1], 128")
    e.i(f"v_lshrrev_b32 v1, 6, v0\nv_and_b32 v{LANE}, 63, v0\nv_readfirstlane_b32 s4, v1\nv_lshlrev_b32 v{L16}, 4, v{LANE}")
def dma(e,ldsb,ldso,voff,srdn,soff,tag,sbase=None):
    e.i(f"s_add_u32 m0, s{ldsb}, {ldso}")
    e.i(f"s_mov_b32 s74, {soff}" if sbase is None else f"s_add_u32 s74, s{sbase}, {soff}")
    e.vm(f"buffer_load_dwordx4 v{voff}, s[{srdn}:{srdn+3}], s74 offen lds",tag)
XS=[38,39,40,41,42,43,44,45]; WT=[50,51,54,55,56,57,58,59]
class DM:
    def __init__(s,e,pre,ld,tag): s.e,s.p,s.l,s.t,s.done=e,pre,ld,tag,False
    def pre(s):
        if s.p and not s.done: s.e.i(s.p); s.done=True
    def __call__(s):
        if s.p and not s.done:
            s.e.i(s.p)
            if s.p.split("\n")[-1].startswith("s_add_u32 m0"): s.e.i("s_nop 0")
        s.e.vm(s.l,s.t)
def ldl(voff,srdn,sreg,imm=0): return f"buffer_load_dwordx4 v{voff}, s[{srdn}:{srdn+3}], s{sreg} offen "+(f"offset:{imm} " if imm else "")+"lds"
def p1_dmas(e,s):
    sl=(s%4)*16384; tg=("d",s); L=[]
    m0=lambda b,o: f"s_add_u32 m0, s{b}, {o}"
    if s<8:
        for q in range(2): L.append(DM(e,None if q else m0(71,sl),ldl(DX+q,8,XS[s],1024*q),tg))
        for mt in range(2): L.append(DM(e,None if mt else m0(71,65536+sl),ldl(DW+mt,12+4*mt,WT[s],1024*mt),tg))
    elif s<10:
        for cp in range(2):
            for sc in range(2): L.append(DM(e,m0(73,cp*65536+sl+sc*4096),ldl(DB,20+4*cp,98+2*(s-8)+sc),tg))
    elif s<14:
        for h in range(2):
            for mt in range(2): L.append(DM(e,m0(72,mt*65536+sl+h*8192-1024*mt),ldl(DW+mt,12+4*mt,WT[2*(s-10)+h],1024*mt),tg))
    return L
def ffn_epi(e,c,F,G,pk=0):
    for t in range(2):
        a=AF+16*t; R=range(8)
        if pk:
            P2=lambda x: f"v[{x}:{x+1}]"; Q=range(a,a+8,2)
            s="".join(f"v_pk_mul_f32 {P2(r+8)}, {P2(r)}, {P2(r+8)}\nv_pk_mul_f32 {P2(r)}, {P2(r)}, s[84:85]\n" for r in Q)
            s+="".join(f"v_exp_f32 v{a+r}, v{a+r}\n" for r in R)+"".join(f"v_pk_add_f32 {P2(r)}, {P2(r)}, s[86:87]\n" for r in Q)
            s+="".join(f"v_rcp_f32 v{a+r}, v{a+r}\n" for r in R)+"".join(f"v_pk_mul_f32 {P2(r+8)}, {P2(r)}, {P2(r+8)}\n" for r in Q)
            if t==0: s=f"s_mov_b32 s84, {NLOG2E}\ns_mov_b32 s85, {NLOG2E}\ns_mov_b32 s86, 1.0\ns_mov_b32 s87, 1.0\n"+s
            F.text(e,s); R=[]
        F.text(e,"".join(f"v_mul_f32 v{a+8+r}, v{a+r}, v{a+8+r}\n" for r in R))
        for op in (f"v_mul_f32 v{{0}}, {NLOG2E}, v{{0}}","v_exp_f32 v{0}, v{0}","v_add_f32 v{0}, 1.0, v{0}","v_rcp_f32 v{0}, v{0}"):
            F.text(e,"".join(op.format(a+r)+"\n" for r in R))
        F.text(e,"".join(f"v_mul_f32 v{a+8+r}, v{a+r}, v{a+8+r}\n" for r in R))
        F.text(e,"".join(f"v_cvt_pk_bf16_f32 v{a+k}, v{a+8+2*k}, v{a+9+2*k}\n" for k in range(4)))
        F.add(lambda t=t,a=a: (e.i(f"s_add_u32 s74, s75, {(4*G+t)*1024}"), e.vm(f"buffer_store_dwordx4 v[{a}:{a+3}], v{L16}, s[32:35], s74 offen {c.st}",("h",G))))
def ssm_consts(e,F):
    lr,li,ld=T,T+1,T+2; t=T+4
    F.add(lambda: e.wait(vm="c"))
    s=f"v_lshlrev_b32 v{lr}, 16, v{lr}\nv_lshlrev_b32 v{li}, 16, v{li}\nv_lshlrev_b32 v{ld}, 16, v{ld}\nv_mul_f32 v{ld}, {LOG2E}, v{ld}\nv_exp_f32 v{ld}, v{ld}\ns_nop 0\nv_cvt_pk_bf16_f32 v{ld}, v{ld}, v{ld}\nv_lshlrev_b32 v{ld}, 16, v{ld}\n"
    la,rev=T+6,T+7
    s+=f"v_mul_f32 v{la}, v{ld}, v{lr}\nv_mul_f32 v{rev}, v{ld}, v{li}\nv_mul_f32 v{la}, {LOG2E}, v{la}\nv_mul_f32 v{rev}, 0.15915494, v{rev}\n"
    s+=cis(LAM,la,rev,t)
    s+=f"v_mul_f32 v{t}, v{lr}, v{lr}\nv_fmac_f32 v{t}, v{li}, v{li}\nv_rcp_f32 v{t}, v{t}\nv_add_f32 v{t+1}, -1.0, v{LAM}\nv_add_f32 v{t}, v{t}, v{t}\n"
    s+=f"v_mul_f32 v{CO}, v{t+1}, v{lr}\nv_mul_f32 v{CO+1}, v{LAM+1}, v{lr}\nv_fmac_f32 v{CO}, v{LAM+1}, v{li}\nv_fma_f32 v{CO+1}, -v{t+1}, v{li}, v{CO+1}\nv_mul_f32 v{CO}, v{CO}, v{t}\nv_mul_f32 v{CO+1}, v{CO+1}, v{t}\n"
    n=T+3
    s+=f"v_lshrrev_b32 v{n}, 4, v{LANE}\nv_lshlrev_b32 v{n}, 3, v{n}\nv_cvt_f32_u32 v{n}, v{n}\nv_mul_f32 v{lr}, v{la}, v{n}\nv_mul_f32 v{li}, v{rev}, v{n}\n"+cis(LQ,lr,li,t)
    s+=f"s_lshl_b32 s3, s7, 5\nv_cvt_f32_u32 v{ld}, s3\nv_add_f32 v{n}, v{n}, v{ld}\nv_mul_f32 v{lr}, v{la}, v{n}\nv_mul_f32 v{li}, v{rev}, v{n}\n"+cis(LP,lr,li,t)
    s+=csq(L8,LAM,t)+csq(L8,L8,t)+csq(L8,L8,t)+csq(L16P,L8,t)+csq(L32,L16P,t)+csq(L128,L32,t)+csq(L128,L128,t)+csq(L512,L128,t)+csq(L512,L512,t)+csq(L1024,L512,t)
    F.text(e,s)
PP=RA
def ssm_a(e,F):
    s="".join(f"v_permlane16_swap_b32 v{AS+r}, v{AS+8+r}\n" for r in range(8))
    for r in range(8):
        zr,zi=AS+r,AS+8+r; t=T+2*(r&1)
        s+=f"v_mul_f32 v{t}, v{CO+1}, v{zi}\nv_mul_f32 v{t+1}, v{CO+1}, v{zr}\nv_fma_f32 v{zr}, v{CO}, v{zr}, -v{t}\nv_fma_f32 v{zi}, v{CO}, v{zi}, v{t+1}\n"
    prev=(AS,AS+8)
    for r in range(1,8):
        n=P(T+2*(r&1))
        s+=f"v_fma_f32 v{n[0]}, v{LAM}, v{prev[0]}, v{AS+r}\nv_fma_f32 v{n[1]}, v{LAM}, v{prev[1]}, v{AS+8+r}\nv_fma_f32 v{n[0]}, -v{LAM+1}, v{prev[1]}, v{n[0]}\nv_fmac_f32 v{n[1]}, v{LAM+1}, v{prev[0]}\n"
        prev=n
    ee=T+2; A=T+4; C=T+6
    s+=combine(ee,A,C,L8,L16P)
    F.text(e,s)
    F.add(lambda: e.ds(f"ds_write_b64 v{SA}, v[{ee}:{ee+1}]","sw"))
    s=f"v_cndmask_b32 v{A}, 0, v{A}, s[76:77]\nv_cndmask_b32 v{A+1}, 0, v{A+1}, s[76:77]\nv_cndmask_b32 v{PP}, v{A}, v{C}, s[78:79]\nv_cndmask_b32 v{PP+1}, v{A+1}, v{C+1}, s[78:79]\n"
    s+=cmac(P(A),P(L8),P(C))+f"v_cndmask_b32 v{PP}, v{PP}, v{A}, s[80:81]\nv_cndmask_b32 v{PP+1}, v{PP+1}, v{A+1}, s[80:81]\n"
    F.text(e,s)
def ssm_b(e,F):
    W=T; R=T+8; ad=T+10
    F.text(e,f"s_lshl_b32 s3, s7, 7\nv_subrev_u32 v{ad}, s3, v{SA}")
    for k in range(4): F.add(lambda k=k: e.ds(f"ds_read_b64 v[{W+2*k}:{W+2*k+1}], v{ad} offset:{128*k}","sr"))
    F.add(lambda: e.wait(lg="sr"))
    s=cmac(P(W+2),P(L32),P(W))+cmac(P(W+4),P(L32),P(W+2))+cmac(P(W+6),P(L32),P(W+4))
    F.text(e,s)
    for k in range(2): F.add(lambda k=k: e.i(f"v_cmp_eq_u32 vcc, -1, v{W+6+k}\nv_mov_b32 v{ad}, 0x7fc00000\ns_nop 0\nv_cndmask_b32 v{W+6+k}, v{W+6+k}, v{ad}, vcc\n"+SETV))
    s=f"v_and_b32 v{ad}, 15, v{LANE}\nv_lshlrev_b32 v{ad}, 3, v{ad}\ns_lshl_b32 s3, s5, 8\ns_lshl_b32 s74, s70, 7\ns_add_u32 s3, s3, s74\n"
    s+=f"s_cmp_eq_u32 s7, 0\ns_cselect_b32 s3, s3, 0x10000\nv_add_u32 v{ad}, s3, v{ad}\n"
    F.text(e,s)
    F.add(lambda: (e.i("s_mov_b64 exec, 0xffff"), e.vm(f"buffer_store_dwordx2 v[{W+6}:{W+7}], v{ad}, s[88:91], 0 offen sc1","pub"), e.i("s_mov_b64 exec, -1")))
    s=""
    for k in range(2):
        s+=f"v_cndmask_b32 v{R+k}, 0, v{W+k}, s[82:83]\nv_cndmask_b32 v{R+k}, v{R+k}, v{W+2+k}, s[84:85]\nv_cndmask_b32 v{R+k}, v{R+k}, v{W+4+k}, s[86:87]\n"
    F.text(e,s+cmac(P(PP),P(LQ),P(R)))
SETV="s_cmp_eq_u32 s70, 1\ns_cselect_b64 vcc, -1, 0"
def spin(e,reg,load,cmp,mask):
    ok=e.label(); lp=e.label()
    e.i(f"s_mov_b32 s94, 0\n{lp}:\n{cmp}\ns_add_u32 s94, s94, 1\ns_nop 2\ns_and_b32 s3, vcc_lo, {mask}\ns_cbranch_scc0 {ok}\ns_cmp_ge_u32 s94, 0x8000\ns_cbranch_scc1 {ok}\ns_sleep 2")
    e.i(f"{load}\ns_waitcnt vmcnt(0)\ns_branch {lp}\n{ok}:\n"+SETV)
CNT=DX
def cnt_load(): return f"global_load_dword v{CNT}, v{CNT+1}, s[66:67] sc1"
def cnt_issue(e): e.i(f"v_and_b32 v{CNT+1}, 15, v{LANE}\nv_lshlrev_b32 v{CNT+1}, 2, v{CNT+1}"); e.vm(cnt_load(),"cnt")
def cnt_check(e): e.wait(vm="cnt"); spin(e,CNT,cnt_load(),f"v_cmp_eq_u32 vcc, 0, v{CNT}","0xffff")
def flag_store(e,val,sm,sj):
    sk=e.label(); e.i(f"s_cmp_lg_u32 s4, 0\ns_cbranch_scc1 {sk}\ns_lshl_b32 s3, s{sm}, 11\ns_add_u32 s3, s3, s{sj}\ns_lshl_b32 s3, s3, 2\ns_add_u32 s3, s3, {S_OFF+4096}\nv_mov_b32 v{T+12}, {val}\ns_mov_b64 exec, 1\nbuffer_store_dword v{T+12}, off, s[28:31], s3 sc1\ns_mov_b64 exec, -1\n{sk}:")
U=T; UB=RA+3
def poll_issue(e,track=True):
    for k in range(4):
        e.i(f"v_add_u32 v{U+2*k}, {256*k}, v{UB}")
    for k in range(4):
        t=f"buffer_load_dwordx2 v[{U+2*k}:{U+2*k+1}], v{U+2*k}, s[88:91], 0 offen sc1"
        e.vm(t,"poll") if track else e.i(t)
def poll_prep(e):
    e.i(f"v_lshrrev_b32 v{UB}, 4, v{LANE}\nv_lshlrev_b32 v{UB}, 10, v{UB}\nv_and_b32 v{U}, 15, v{LANE}\nv_lshl_add_u32 v{UB}, v{U}, 3, v{UB}")
    e.i(f"s_sub_u32 s3, s5, 16\ns_lshl_b32 s3, s3, 8\ns_lshl_b32 s74, s70, 7\ns_add_u32 s3, s3, s74\nv_add_u32 v{UB}, s3, v{UB}")
def poll_check(e):
    e.wait(vm="poll"); ok=e.label(); lp=e.label(); t=T+8
    e.i(f"s_mov_b32 s94, 0\n{lp}:\nv_max3_u32 v{t}, v{U}, v{U+1}, v{U+2}\nv_max3_u32 v{t}, v{t}, v{U+3}, v{U+4}\nv_max3_u32 v{t}, v{t}, v{U+5}, v{U+6}\nv_max_u32 v{t}, v{t}, v{U+7}")
    e.i(f"v_cmp_eq_u32 vcc, -1, v{t}\ns_add_u32 s94, s94, 1\ns_nop 3\ns_cbranch_vccz {ok}\ns_cmp_ge_u32 s94, 0x8000\ns_cbranch_scc1 {ok}\ns_sleep 1")
    poll_issue(e,False); e.i(f"s_waitcnt vmcnt(0)\ns_branch {lp}\n{ok}:\n"+SETV)
def ssm_c(e,c,F):
    s=cmac(P(U+2),P(L128),P(U))+cmac(P(U+4),P(L128),P(U+2))+cmac(P(U+6),P(L128),P(U+4))
    s+=combine(U+6,U,U+2,L512,L1024)+cmac(P(PP),P(LP),P(U+6))
    prev=P(PP)
    for r in range(8):
        n=(AS+r,AS+8+r); s+=cmac(n,P(LAM),prev); prev=n
    wa,ra,t=T+8,T+9,T+10
    s+=f"v_and_b32 v{wa}, 15, v{LANE}\nv_lshlrev_b32 v{wa}, 6, v{wa}\nv_and_or_b32 v{wa}, v{LANE}, 48, v{wa}\ns_add_u32 s3, s71, {SCR}\nv_add_u32 v{wa}, s3, v{wa}\n"
    s+=f"v_lshrrev_b32 v{ra}, 5, v{LANE}\nv_bfe_u32 v{t}, v{LANE}, 2, 2\nv_lshl_add_u32 v{ra}, v{ra}, 3, v{t}\nv_lshlrev_b32 v{ra}, 6, v{ra}\nv_and_b32 v{t}, 1, v{LANE}\nv_lshl_add_u32 v{ra}, v{t}, 5, v{ra}\n"
    s+=f"v_and_or_b32 v{ra}, v{LANE}, 16, v{ra}\nv_and_b32 v{t}, 2, v{LANE}\nv_lshl_add_u32 v{ra}, v{t}, 2, v{ra}\ns_add_u32 s3, s71, {SCR}\nv_add_u32 v{ra}, s3, v{ra}\n"
    for k in range(4): s+=f"v_cvt_pk_bf16_f32 v{T+k}, v{AS+2*k}, v{AS+2*k+1}\n"
    for k in range(4): s+=f"v_cvt_pk_bf16_f32 v{T+4+k}, -v{AS+8+2*k}, -v{AS+9+2*k}\n"
    F.text(e,s)
    for cp in range(2): F.add(lambda cp=cp: e.ds(f"ds_write_b128 v{wa}, v[{T+4*cp}:{T+4*cp+3}] offset:{1024*cp}","tw"))
    F.add(lambda: e.wait(lg="tw"))
    for cp in range(2):
        for h in range(2): F.add(lambda cp=cp,h=h: e.ds(f"ds_read_b64_tr_b16 v[{AS+4*cp+2*h}:{AS+4*cp+2*h+1}], v{ra} offset:{1024*cp+256*h}","tr"))
    F.add(lambda: e.wait(lg="tr"))
    for cp in range(2): F.add(lambda cp=cp: (e.i(f"s_add_u32 s74, s95, {cp*32*1024}"), e.vm(f"buffer_store_dwordx4 v[{AS+4*cp}:{AS+4*cp+3}], v{L16}, s[28:31], s74 offen {c.st}","hs")))
def gate(e,c):
    skip=e.label()
    e.i(f"s_cmp_lg_u32 s6, 14\ns_cbranch_scc1 {skip}\ns_cmp_lg_u32 s70, 0\ns_cbranch_scc1 {skip}")
    e.i(f"v_lshrrev_b32 v{DW}, 5, v{LANE}\nv_lshlrev_b32 v{DW}, 4, v{DW}\nv_add_u32 v{DW}, {SCR+16384+1024}, v{DW}")
    for b in range(4):
        for k in range(8):
            if k%4==0: e.i(f"v_add_u32 v{DW+1}, s{XS[2*b+k//4]}, v{DW}")
            e.i(f"ds_read_b128 v[{FB+4*k}:{FB+4*k+3}], v{DW+1} offset:{32*(k%4)}")
        e.i("s_waitcnt lgkmcnt(0)")
        for k in range(8):
            s=8*b+k; e.i(f"v_mfma_f32_32x32x16_bf16 v[{AF}:{AF+15}], v[{FB+4*k}:{FB+4*k+3}], v[{4*s}:{4*s+3}], "+("0" if s==0 else f"v[{AF}:{AF+15}]"))
        e.i("s_nop 7")
    a=AF
    e.i(f"s_lshl_b32 s3, s5, 2\ns_add_u32 s3, s3, s7\ns_lshl_b32 s3, s3, 7\ns_add_u32 s3, s3, {G_OFF}\nv_and_b32 v{DW}, 31, v{LANE}\nv_lshlrev_b32 v{DW}, 2, v{DW}\ns_nop 15\ns_nop 3")
    e.i(f"v_cvt_pk_bf16_f32 v{a}, v{a}, v{a}\nv_lshlrev_b32 v{a}, 16, v{a}\nv_mul_f32 v{a}, {NLOG2E}, v{a}\nv_exp_f32 v{a}, v{a}\ns_nop 0\nv_add_f32 v{a}, 1.0, v{a}\nv_rcp_f32 v{a}, v{a}\ns_nop 0\nv_cvt_pk_bf16_f32 v{a}, v{a}, v{a}\nv_lshlrev_b32 v{a}, 16, v{a}")
    e.i(f"buffer_store_dword v{a}, v{DW}, s[28:31], s3 offen sc1\n{skip}:")
def p1_prologue(e,c):
    e.i("s_and_b32 s3, s2, 1\ns_lshl_b32 s3, s3, 3\ns_bfe_u32 s5, s2, 0x30003\ns_add_u32 s5, s5, s3")
    e.i("s_bfe_u32 s3, s2, 0x20001\ns_lshr_b32 s6, s2, 6\ns_lshl_b32 s6, s6, 2\ns_add_u32 s6, s6, s3")
    e.i("s_and_b32 s7, s4, 3\ns_lshr_b32 s70, s4, 2\ns_lshl_b32 s71, s4, 11\ns_lshl_b32 s72, s4, 10\ns_lshl_b32 s73, s70, 13\ns_lshl_b32 s3, s7, 10\ns_add_u32 s73, s73, s3")
    r8,p,t0,t1,t2=1,2,3,4,5
    e.i(f"v_lshrrev_b32 v{r8}, 3, v{LANE}\nv_and_b32 v{p}, 7, v{LANE}")
    for q in range(2):
        e.i(f"s_lshl_b32 s3, s4, 4\ns_add_u32 s3, s3, {8*q}\nv_add_u32 v{t0}, s3, v{r8}\nv_and_b32 v{t1}, 31, v{t0}")
        tau(e,DX+q,t1,t2)
        e.i(f"v_and_b32 v{t1}, 0x60, v{t0}\nv_add_u32 v{DX+q}, v{DX+q}, v{t1}\ns_lshl_b32 s3, s5, 7\nv_add_u32 v{DX+q}, s3, v{DX+q}\nv_bfe_u32 v{t0}, v{t0}, 1, 3\nv_xor_b32 v{t0}, v{t0}, v{p}\nv_lshlrev_b32 v{t0}, 4, v{t0}\nv_lshl_add_u32 v{DX+q}, v{DX+q}, 10, v{t0}")
        if q: e.i(f"v_subrev_u32 v{DX+1}, 1024, v{DX+1}")
    e.i(f"s_lshl_b32 s3, s4, 3\nv_add_u32 v{t0}, s3, v{r8}\nv_mul_u32_u24 v{t0}, 3584, v{t0}\ns_lshl_b32 s3, s6, 8\nv_add_u32 v{t0}, s3, v{t0}\nv_and_b32 v{t1}, 2, v{r8}\nv_xor_b32 v{t1}, v{t1}, v{p}")
    e.i(f"v_lshl_add_u32 v{DW}, v{t1}, 4, v{t0}\nv_xor_b32 v{t1}, 4, v{t1}\nv_lshl_add_u32 v{DW+1}, v{t1}, 4, v{t0}")
    e.i("s_waitcnt lgkmcnt(0)")
    srd(e,8,36,2048*1024); srd(e,12,56,512*3584); srd(e,16,58,512*3584+1024); e.i("s_sub_u32 s16, s16, 1024\ns_subb_u32 s17, s17, 0"); srd(e,28,68,WS_SIZE); srd(e,32,68,WS_SIZE)
    e.i(f"s_cmp_lt_u32 s6, 14\ns_cselect_b32 s14, s14, 0\ns_cselect_b32 s18, s18, 0\ns_cselect_b32 s34, s34, 0")
    srd(e,88,68,4096); e.i(f"s_lshl_b32 s3, s6, 13\ns_add_u32 s3, s3, {S_OFF}\ns_add_u32 s88, s88, s3\ns_addc_u32 s89, s89, 0")
    stamp(e,c,0,True); stamp(e,c,1)
    e.i(f"s_lshl_b32 s3, s6, 1\ns_add_u32 s3, s3, s70\ns_lshl_b32 s3, s3, 5\nv_and_b32 v{t0}, 15, v{LANE}\nv_lshl_add_u32 v{t0}, v{t0}, 1, s3")
    for k,pp in enumerate((38,40,50)): e.vm(f"global_load_ushort v{T+k}, v{t0}, s[{pp}:{pp+1}]","c")
    srd(e,20,42,512*1024); srd(e,24,44,512*1024)
    e.i("s_lshr_b32 s97, s6, 2\ns_lshl_b32 s97, s97, 1\ns_add_u32 s97, s97, s5" if c.rot==1 else f"s_lshr_b32 s97, s6, 2\ns_add_u32 s97, s97, s5\ns_lshl_b32 s97, s97, {c.rot-1}" if c.rot else "s_mov_b32 s97, 0")
    for k in range(8): e.i(f"s_add_u32 s3, s97, {k}\ns_and_b32 s3, s3, 7\ns_lshl_b32 s{XS[k]}, s3, 7\ns_mul_i32 s{WT[k]}, s3, {64*3584}")
    for k in range(4): e.i(f"s_cmp_eq_u32 s70, 0\ns_cselect_b32 s{98+k}, s{XS[4*(k>>1)+(k&1)]}, s{XS[4*(k>>1)+2+(k&1)]}")
    stamp(e,c,20)
    for s in range(c.pre):
        for w in range(8):
            if c.tl[w]==str(s): touch1(e,w,*TCH_L[w])
        for f in p1_dmas(e,s): f()
        if s==0:
            sk=e.label()
            e.i(f"s_cmp_lg_u32 s6, 15\ns_cbranch_scc1 {sk}\ns_cmp_ge_u32 s4, 5\ns_cbranch_scc1 {sk}\ns_lshl_b32 s3, s5, 13\ns_add_u32 s3, s3, s72\ns_add_u32 s3, s3, {S_OFF}")
            e.i(f"v_mov_b32 v8, -1\nv_mov_b32 v9, -1\nv_mov_b32 v10, -1\nv_mov_b32 v11, -1\nbuffer_store_dwordx4 v[8:11], v{L16}, s[28:31], s3 offen sc1\ns_waitcnt vmcnt(0)\n{sk}:")
            sk=e.label()
            e.i(f"s_cmp_lg_u32 s6, 14\ns_cbranch_scc1 {sk}\ns_cmp_lg_u32 s4, 0\ns_cbranch_scc1 {sk}\ns_mov_b32 m0, {SCR+16384+1024}\ns_nop 0\nglobal_load_lds_dwordx4 v{L16}, s[62:63]\n{sk}:")
        if c.ibar and s<c.pre-1: e.i("s_barrier")
        stamp(e,c,21+s)
    e.i(f"s_lshl_b32 s3, s7, 3\nv_add_u32 v{t0}, s3, v{r8}\nv_bfe_u32 v{t1}, v{t0}, 1, 3\nv_xor_b32 v{t1}, v{t1}, v{p}\ns_lshl_b32 s3, s6, 5\nv_add_u32 v{t0}, s3, v{t0}\nv_lshlrev_b32 v{t0}, 10, v{t0}\nv_lshl_add_u32 v{DB}, v{t1}, 4, v{t0}")
    e.i(f"v_and_b32 v{t0}, 31, v{LANE}\nv_lshrrev_b32 v{t1}, 5, v{LANE}\nv_bfe_u32 v{t2}, v{t0}, 1, 3\nv_xor_b32 v{t1}, v{t1}, v{t2}\ns_lshl_b32 s3, s7, 12\nv_lshl_add_u32 v{t0}, v{t0}, 7, s3\nv_lshl_add_u32 v{RA}, v{t1}, 4, v{t0}")
    for k in range(1,4): e.i(f"v_xor_b32 v{RA+k}, {32*k}, v{RA}")
    e.i(f"v_lshrrev_b32 v{t0}, 5, v{LANE}\nv_bfe_u32 v{t1}, v{LANE}, 2, 2\nv_lshl_add_u32 v{t0}, v{t0}, 4, v{t1}\nv_lshlrev_b32 v{t0}, 7, v{t0}\nv_and_b32 v{t1}, 3, v{LANE}\nv_lshl_add_u32 v{t0}, v{t1}, 3, v{t0}")
    e.i(f"v_bfe_u32 v{t1}, v{LANE}, 4, 1\nv_lshl_add_u32 v{t0}, v{t1}, 10, v{t0}\nv_bfe_u32 v{t1}, v{LANE}, 3, 2\ns_lshl_b32 s3, s70, 1\nv_xor_b32 v{t1}, s3, v{t1}\nv_lshl_add_u32 v{t0}, v{t1}, 5, v{t0}\nv_add_u32 v{RW}, 0x10000, v{t0}\nv_xor_b32 v{RW+1}, 32, v{RW}")
    e.i(f"s_lshl_b32 s3, s5, 2\ns_add_u32 s3, s3, s7\ns_mul_i32 s95, s3, {176*1024}\ns_lshl_b32 s3, s6, 13\ns_add_u32 s75, s95, s3\ns_lshl_b32 s3, s70, 11\ns_add_u32 s75, s75, s3")
    e.i(f"s_lshl_b32 s3, s6, 1\ns_add_u32 s3, s3, s70\ns_add_u32 s3, s3, 112\ns_lshl_b32 s3, s3, 10\ns_add_u32 s95, s95, s3")
    e.i(f"s_mov_b32 s76, 0xffff0000\ns_mov_b32 s77, 0xffff0000\ns_mov_b32 s78, 0\ns_mov_b32 s79, 0xffff\ns_mov_b32 s80, 0\ns_mov_b32 s81, 0xffff0000")
    for k in range(3): e.i(f"s_cmp_eq_u32 s7, {k+1}\ns_cselect_b64 s[{82+2*k}:{83+2*k}], -1, 0")
    e.i(f"v_and_b32 v{SA}, 15, v{LANE}\ns_lshl_b32 s3, s4, 7\ns_add_u32 s3, s3, {SCR+16384}\nv_lshl_add_u32 v{SA}, v{SA}, 3, s3")
    groups=[]
    for s in range(14):
        sl=(s%4)*16384
        for gi in range(2 if s<8 else 4):
            b=FB+16*(len(groups)&1); rd=[]; mf=[]
            if s<8 or s>=10:
                for kk in range(2):
                    sp=2*gi+kk; ks=(4*s if s<8 else 8*(s-10))+sp
                    if s<8: rd.append(f"ds_read_b128 v[{4*ks}:{4*ks+3}], v{RA+sp} offset:{sl}")
                    for t in range(2):
                        f=b+8*kk+4*t
                        for h in range(2): rd.append(f"ds_read_b64_tr_b16 v[{f+2*h}:{f+2*h+1}], v{RW+t} offset:{sl+((32 if s<8 else 16)*sp+4*h)*128}")
                        a=AF+16*t; mf.append(f"v_mfma_f32_32x32x16_bf16 v[{a}:{a+15}], v[{f}:{f+3}], v[{4*ks}:{4*ks+3}], "+("0" if ks==0 else f"v[{a}:{a+15}]"))
            else:
                for kk in range(4):
                    ks=16*(s-8)+4*gi+kk; f=b+4*kk
                    rd.append(f"ds_read_b128 v[{f}:{f+3}], v{RA+kk} offset:{sl+gi*4096}")
                    mf.append(f"v_mfma_f32_32x32x16_bf16 v[{AS}:{AS+15}], v[{4*ks}:{4*ks+3}], v[{f}:{f+3}], "+("0" if ks==0 else f"v[{AS}:{AS+15}]"))
            groups.append((s,gi,rd,mf))
    return groups
```

```python
from gen1 import *
import gen3
from gen3 import kinfo,KN,kdesc,khead,TA,TS,BS,CR,setup_early,bdma_f,bdma_s,fl_load,fl_issue,fl_check,VW,VC,FLV,FLA
ACF=64; ACS=0; HB=128; VH1=214; RT0=215; RTT=216; RC=202; GV=206; WA=222
def mf(a,A,B,z): return f"v_mfma_f32_32x32x16_bf16 v[{a}:{a+15}], v[{A}:{A+3}], v[{B}:{B+3}], "+("0" if z else f"v[{a}:{a+15}]")
def hreg(c,n): return 8*n if n<7 else HB+8*((n-7)%c.nh)
def hload(e,c,n,mts=(0,1)):
    k,a,b=kinfo(n); hb=hreg(c,n)
    e.i(f"s_add_u32 s74, s{100+b}, s{TA[a]}" if k=="f" else f"s_add_u32 s74, s{80+a}, s{TS[b]}")
    if c.fakeh and n>=7: e.i(f"s_add_u32 s74, s100, s{TA[n%7]}")
    for mt in mts: e.vm(f"buffer_load_dwordx4 v[{hb+4*mt}:{hb+4*mt+3}], v{VH1 if mt else L16}, s[28:31], s74 offen {c.ld}",("h2",n))
def hdm(e,c,n):
    k,a,b=kinfo(n); hb=hreg(c,n)
    p=f"s_add_u32 s74, s{100+b}, s{TA[a]}" if k=="f" else f"s_add_u32 s74, s{80+a}, s{TS[b]}"
    return [DM(e,p,f"buffer_load_dwordx4 v[{hb+4*mt}:{hb+4*mt+3}], v{VH1 if mt else L16}, s[28:31], s74 offen {c.ld}",("h2",n)) for mt in range(2)]
def touchC(e):
    e.i(f"s_cmp_eq_u32 s70, 0\ns_cselect_b32 s20, s46, s48\ns_cselect_b32 s21, s47, s49\ns_lshr_b32 s3, s2, 3\ns_lshl_b32 s3, s3, 2\ns_add_u32 s3, s3, s7\ns_lshl_b32 s3, s3, 5")
    e.i(f"v_and_b32 v{T+12}, 31, v{LANE}\nv_add_u32 v{T+12}, s3, v{T+12}\nv_lshlrev_b32 v{T+12}, 7, v{T+12}")
    e.vm(f"global_load_dword v{FB+31}, v{T+12}, s[20:21]","t")
def setup_e2(e):
    t0,t1=T+10,T+12
    e.i(f"v_add_u32 v{VH1}, {176*1024}, v{L16}\nv_lshrrev_b32 v{t0}, 5, v{LANE}\nv_bfe_u32 v{t1}, v{LANE}, 2, 2\nv_lshl_add_u32 v{t0}, v{t0}, 2, v{t1}\nv_lshl_add_u32 v{t0}, v{t0}, 7, s71\nv_bfe_u32 v{t1}, v{LANE}, 3, 1\nv_lshl_add_u32 v{t0}, v{t1}, 6, v{t0}")
    e.i(f"v_bfe_u32 v{t1}, v{LANE}, 4, 1\nv_lshl_add_u32 v{t0}, v{t1}, 5, v{t0}\nv_and_b32 v{t1}, 3, v{LANE}\nv_lshl_add_u32 v{RT0}, v{t1}, 3, v{t0}")
def bread_f(n,dst):
    L=[f"v_xor_b32 v216, 64, v215",f"v_add_u32 v212, 0x10000, v215",f"v_add_u32 v213, 0x10000, v216",f"v_add_u32 v217, 0x20000, v215",f"v_add_u32 v221, 0x20000, v216"] if n==0 else []
    return L+[f"ds_read_b64_tr_b16 v[{dst+4*nt+2*h}:{dst+4*nt+2*h+1}], v{[(215,216),(212,213),(217,221)][BS[n]>>16][nt]} offset:{(BS[n]&65535)+h*1024}" for nt in range(2) for h in range(2)]
def setup_late(e,c):
    e.i("s_and_b32 s3, s4, 1\ns_cmp_eq_u32 s3, 1\ns_cselect_b32 s20, s48, s46\ns_cselect_b32 s21, s49, s47\ns_mov_b32 s22, 0x80000\ns_mov_b32 s23, 0x20000")
    e.i("s_lshl_b32 s3, s3, 5\ns_add_u32 s3, s3, 112\ns_lshr_b32 s82, s4, 1\ns_lshl_b32 s74, s82, 2\ns_add_u32 s3, s3, s74\ns_lshl_b32 s3, s3, 10\ns_add_u32 s80, s73, s3\ns_lshl_b32 s82, s82, 7")
    e.i("s_lshr_b32 s3, s99, 2\ns_xor_b32 s3, s3, s98\ns_and_b32 s3, s3, 1")
    e.i("s_lshl_b32 s74, s3, 14\ns_xor_b32 s81, s74, 0x4000\ns_add_u32 s81, s81, s80\ns_add_u32 s80, s80, s74\ns_lshl_b32 s74, s3, 9\ns_xor_b32 s83, s74, 0x200\ns_add_u32 s83, s83, s82\ns_add_u32 s82, s82, s74")
    r8,t0=VC+1,T+12
    e.i(f"v_lshrrev_b32 v{r8}, 3, v{LANE}\nv_lshrrev_b32 v{t0}, 4, v{LANE}\nv_xor_b32 v{t0}, v{t0}, v{LANE}\nv_and_b32 v{t0}, 7, v{t0}\ns_lshl_b32 s3, s99, 16\nv_lshl_add_u32 v{t0}, v{t0}, 4, s3\nv_lshl_add_u32 v{VC}, v{r8}, 10, v{t0}\nv_xor_b32 v{VC+1}, 64, v{VC}")
def publish(e,c):
    e.wait(vm="hs"); e.wait(vm=("h",1)); e.i("s_barrier"); flag_store(e,2,5,6); stamp(e,c,33)
def g0_groups(c):
    G=[]
    for n in range(22):
        k,a,bb=kinfo(n); b=FB+8*(n&1)
        if c.stg and 7<=n<14: b=8*(n-7)
        rd=[] if c.stg and 7<=n<14 else bread_f(n,b) if k=="f" else [f"ds_read_b128 v[{b+4*nt}:{b+4*nt+3}], v{RC+bb} offset:{CR[a][nt]*16384}" for nt in range(2)]
        G.append((14,n,rd,[mf((ACF if k=="f" else ACS)+(2*nt+mt)*16,b+4*nt,hreg(c,n)+4*mt,n in (0,14)) for nt in range(2) for mt in range(2)]))
    return G
def run_groups(e,c,groups,g0,g1,F,D,pre,sync,per):
    RQ=Fill()
    def reads(g):
        s,gi=groups[g][:2]
        if s==14:
            while any(getattr(x,'t',None)==('b',gi) for x in D.q): D.run(1)
            RQ.add(lambda: e.wait(vm=("b",gi)))
        for r in groups[g][2]: RQ.add(lambda r=r: e.ds(r,("r",g)) if r.startswith("ds_") else e.i(r))
    if g0==0 or groups[g0-1] is None: reads(g0); RQ.flush()
    for g in range(g0,g1):
        s,gi,rd,mfs=groups[g]
        nf = g+1<g1 and groups[g+1][1]==0 and groups[g+1][0]<14
        e.wait(lg=("r",g))
        pre(s,gi)
        if s==14:
            while any(getattr(x,'t',None)==('h2',gi) for x in D.q): D.run(1)
            e.wait(vm=("h2",gi))
        if c.prio==1: e.i('s_setprio 1')
        for k,m in enumerate(mfs):
            if k==(c.pre_bar if nf else 0) and g+1<g1:
                if nf: sync(groups[g+1][0])
                reads(g+1)
            dr=D.q and (s<11 or s==14 or k%c.dp==0)
            if dr and c.pp and hasattr(D.q[0],"pre"):
                ents=[D.q.pop(0)]
                if c.pp==2 and D.q and hasattr(D.q[0],"pre") and len(D.q)>3-k: ents.append(D.q.pop(0))
                l1,l2=e.label(),e.label(); st=e.state()
                e.i(f"s_cbranch_vccnz {l1}")
                for x in ents: x()
                e.i(f"{l1}:"); e.i(m); e.i(f"s_cbranch_vccz {l2}"); e.restore(st)
                for x in ents: x()
                e.i(f"{l2}:"); RQ.run(c.spread if k<3 else 99)
            else:
                if dr and hasattr(D.q[0],"pre"): D.q[0].pre()
                e.i(m); RQ.run(c.spread if k<3 else 99)
                if dr: D.run(1)
            if c.nof and 10<=s<14: F.q=[]
            if not D.q or s>=11: F.run(per(s))
            if c.prio==1 and k==3: e.i('s_setprio 0')
def body(e,c):
    groups=p1_prologue(e,c)+g0_groups(c)
    F=Fill(); D=Fill(); z={}
    def sync(s):
        if s in (11+c.slow,12+c.slow): F.flush()
        if s<=11: D.flush()
        if s==11: cnt_check(e); e.wait(vm=("h",0))
        e.wait(vm=("d",s),lg="*"); e.i("s_barrier"); stamp(e,c,2+s)
        if s==0:
            sk=e.label(); e.i(f"s_cmp_lg_u32 s6, 15\ns_cbranch_scc1 {sk}\ns_cmp_lg_u32 s4, 0\ns_cbranch_scc1 {sk}\ns_lshl_b32 s3, s5, 2\nv_mov_b32 v1, s3\nv_mov_b32 v2, 1\ns_mov_b64 exec, 1\nglobal_store_dword v1, v2, s[66:67] sc1\ns_mov_b64 exec, -1\n{sk}:")
        if s==8-c.dist: e.i(f"v_add_u32 v{DW}, 128, v{DW}\nv_add_u32 v{DW+1}, 128, v{DW+1}")
        if s==8:
            a,b2=T+8,T+9
            e.i(f"v_and_b32 v{a}, 15, v{LANE}\nv_lshrrev_b32 v{b2}, 5, v{LANE}\nv_lshrrev_b32 v{RA}, 1, v{a}\nv_xor_b32 v{b2}, v{b2}, v{RA}\ns_lshl_b32 s3, s70, 11\nv_lshl_add_u32 v{a}, v{a}, 7, s3\nv_lshl_add_u32 v{a}, v{b2}, 4, v{a}\nv_bfe_u32 v{b2}, v{LANE}, 4, 1\nv_lshl_add_u32 v{RA}, v{b2}, 16, v{a}")
            for k in range(1,4): e.i(f"v_xor_b32 v{RA+k}, {32*k}, v{RA}")
            e.i(f"v_mul_u32_u24 v{b2}, {65536-1024}, v{b2}\nv_subrev_u32 v{b2}, 0x10000, v{b2}\nv_lshrrev_b32 v{a}, 5, v{LANE}\nv_lshlrev_b32 v{a}, 10, v{a}\nv_sub_u32 v{b2}, v{b2}, v{a}\nv_add_u32 v{RW}, v{RW}, v{b2}\nv_add_u32 v{RW+1}, v{RW+1}, v{b2}")
        if s==11: flag_store(e,1,5,6); setup_e2(e)
        for s2 in ([s+c.dist] if s else range(c.pre,c.dist+1)):
            for f in ([] if s2>13 else p1_dmas(e,s2)): D.add(f)
        for w in range(8):
            if c.tl[w]==chr(97+s): D.add(lambda w=w: touch1(e,w,*TCH_L[w]))
            if c.ta>=0 and c.tas[w]!='x' and s==c.ta+int(c.tas[w]): D.add(lambda w=w: touch1(e,w,*TCH_A[w]))
            if c.tb>=0 and c.tbs[w]!='x' and s==c.tb+int(c.tbs[w]): D.add(lambda w=w: touch1(e,w,*TCH_B[w]))
        if s>=11:
            for n in {11:(0,1),12:(2,3),13:(4,5,6)}[s]:
                for f in bdma_f(e,n): D.add(f)
    def hq(n0,n1):
        for n in range(n0,n1):
            D.q+=hdm(e,c,n)
    def stage(n):
        e.wait(vm=("b",n))
        for r in bread_f(n,8*(n-7)): e.ds(r,("st",n))
    def p2common(n):
        if not c.stg:
            for f in {2:lambda: bdma_f(e,10)+bdma_f(e,11),4:lambda: bdma_f(e,12)+bdma_f(e,13),7:lambda: bdma_s(e,0,0),9:lambda: bdma_s(e,0,1),12:lambda: bdma_s(e,1,0),14:lambda: bdma_s(e,1,1)}.get(n if n<7 or not c.noc else -1,lambda: [])(): D.add(f)
            return
        if n==1: setup_late(e,c)
        for q in {2:(7,8),5:(10,11),7:(12,13),6:(9,)}.get(n,()): stage(q)
        for f in {2:lambda: bdma_f(e,10)+bdma_f(e,11),3:lambda: bdma_s(e,0,1),4:lambda: bdma_f(e,12)+bdma_f(e,13),6:lambda: bdma_s(e,1,0),7:lambda: bdma_s(e,0,0),8:lambda: bdma_s(e,1,1)}.get(n,lambda: [])(): D.add(f)
        if n==8: e.wait(lg="*")
    def pre(s,gi):
        if (s,gi)==(8,1): ffn_epi(e,c,F,0)
        if (s,gi)==(9,0): cnt_issue(e)
        if (s,gi)==(10,0):
            F.flush(); z["st"]=e.state(); e.i("s_cmp_ge_u32 s6, 14\ns_cbranch_scc1 Lzpath"); setup_early(e,c)
        if (s,gi)==(10,1): ssm_a(e,F)
        if (s,gi)==(11+c.slow,0): ssm_b(e,F)
        if (s,gi)==(c.fi//4,c.fi%4): D.add(lambda: fl_issue(e,2))
        if (s,gi)==(c.fc//4,c.fc%4): D.add(lambda: fl_check(e,1)); hq(0,c.he)
        if (s,gi)==(13,0): F.add(lambda: poll_prep(e))
        if (s,gi)==(13,3): F.add(lambda: poll_issue(e))
        if s<14: return
        n=gi
        if chr(97+n) in c.xb: e.i("s_barrier")
        if n==0 and not c.stg:
            stamp(e,c,16); D.flush(); F.flush(); e.i("s_barrier"); stamp(e,c,24); e.i("s_nop 7")
            ffn_epi(e,c,F,1,1); F.flush(); stamp(e,c,17)
            for f in bdma_f(e,7)[:c.b7]: f()
            if c.tc==1: touchC(e)
            poll_check(e); ssm_c(e,c,F); F.flush(); stamp(e,c,19)
            if c.tc==2: touchC(e)
            e.wait(vm=("h",1)); e.i("s_barrier"); flag_store(e,2,5,6); stamp(e,c,33)
            hq(c.he,7); D.flush()
            for f in bdma_f(e,7)[c.b7:]+bdma_f(e,8)+bdma_f(e,9): f()
            e.i("Lp1end:"); setup_late(e,c); gen3.setup_late2(e,c)
            if c.prio==3: sk=e.label(); e.i(f"s_cmp_eq_u32 s70, 0\ns_cbranch_scc1 {sk}\ns_setprio 1\n{sk}:")
        if n==0 and c.stg:
            stamp(e,c,16); D.flush(); F.flush(); e.i("s_barrier"); stamp(e,c,24)
            for f in bdma_f(e,7)+bdma_f(e,8): D.add(f)
            hq(c.he,7)
            if not c.b7: e.i("s_nop 7")
            D.run(c.b7); ffn_epi(e,c,F,1,1)
            while F.q: F.run(c.lp); D.run(1)
            D.flush(); stamp(e,c,17); poll_check(e); ssm_c(e,c,F); F.add(lambda: D.q.extend(bdma_f(e,9)))
        if n==c.p2 and c.stg: e.wait(vm=("h",1)); e.i("s_barrier"); flag_store(e,2,5,6); stamp(e,c,33)
        if n==4 and c.stg: F.flush(); D.flush(); stamp(e,c,19); e.i("Lp1end:"); gen3.setup_late2(e,c)
        p2common(n)
        if n==c.pg: e.wait(vm="hs"); e.i("s_barrier"); flag_store(e,3,5,6)
        if n==c.f2i or n==c.f3i: fl_issue(e)
        if n==c.f2c:
            stamp(e,c,32); fl_check(e,2); stamp(e,c,34)
            for q in range(7,7+c.nh): hload(e,c,q)
        if n==c.f3c: stamp(e,c,38); fl_check(e,3); stamp(e,c,39)
        if n>=8 and n-1+c.nh<14: hq(n-1+c.nh,n+c.nh)
        if n>=c.f3c:
            hq(14 if n==c.f3c else n-1+c.nh,min(22,n+c.nh))
        if n==c.f3c+1: gen3.epi_loads(e,c)
        if n in (2,4,7,8,10,12,14,16,18,20): stamp(e,c,40+n)
        if n==15:
            F.add(lambda: e.wait(vm="g"))
            for mt in range(2): F.text(e,f"v_sub_f32 v{T+10+mt}, 1.0, v{GV+mt}\nv_cvt_pk_bf16_f32 v{T+10+mt}, v{T+10+mt}, v{T+10+mt}\nv_lshlrev_b32 v{T+10+mt}, 16, v{T+10+mt}")
            for i in range(64): F.text(e,f"v_mul_f32 v{ACF+i}, v{T+10+((i>>4)&1)}, v{ACF+i}")
            for cc in range(2):
                xs=T+6+2*cc; o=232+4*cc
                for kk in range(2):
                    F.text(e,f"v_lshlrev_b32 v{T}, 16, v{xs+kk}\nv_lshlrev_b32 v{T+1}, 16, v{T+4+kk}\nv_and_b32 v{T+2}, 0xffff0000, v{xs+kk}\nv_and_b32 v{T+3}, 0xffff0000, v{T+4+kk}\nv_mul_f32 v{T}, v{T}, v{T+1}\nv_mul_f32 v{T+2}, v{T+2}, v{T+3}\nv_cvt_pk_bf16_f32 v{T}, v{T}, v{T+2}")
                    F.text(e,f"v_lshlrev_b32 v{o+2*kk}, 16, v{T}\nv_and_b32 v{o+2*kk+1}, 0xffff0000, v{T}\nv_mul_f32 v{o+2*kk}, v{o+2*kk}, v{GV+2+cc}\nv_mul_f32 v{o+2*kk+1}, v{o+2*kk+1}, v{GV+2+cc}")
            F.text(e,f"v_add_u32 v{T}, 0x10000, v{GV+5}")
    per=lambda s: {8:5,9:6,10:5,11:5,12:5,13:5,14:c.p14}.get(s,4)
    ssm_consts(e,F); F.flush(); e.i(SETV); sync(0)
    run_groups(e,c,groups,0,len(groups),F,D,pre,sync,per)
    F.flush(); D.flush()
    final(e,c); prof_end(e,c,0); dbg_time(e,c); e.i("Lexit:\ns_endpgm")
    e.restore(z["st"]); e.i("Lzpath:\ns_nop 7\ns_nop 3")
    ssm_a(e,F); F.flush(); cnt_check(e); e.wait(vm="*",lg="*"); e.i("s_barrier"); stamp(e,c,16)
    ssm_b(e,F); F.flush(); poll_prep(e); gate(e,c); stamp(e,c,17); poll_issue(e); poll_check(e); ssm_c(e,c,F); F.flush(); stamp(e,c,19)
    e.wait(vm="*",lg="*"); e.i("s_barrier"); flag_store(e,3,5,6); stamp(e,c,33)
    setup_early(e,c); setup_e2(e); fl_issue(e,2)
    for n in range(10):
        for f in bdma_f(e,n): f()
    fl_check(e,1); hq(0,7); D.flush()
    G=[None]+g0_groups(c)[:5]
    if c.stg: run_groups(e,c,G,1,5,F,D,lambda s,n: p2common(n),None,per); D.flush()
    e.wait(vm=("b",4))
    for r in G[5 if c.stg else 1][2]: e.i(r)
    e.wait(vm="*",lg="*"); e.i("s_branch Lp1end")
def final(e,c):
    srd(e,24,64,2048*2048); stamp(e,c,35); e.i("s_nop 7")
    for i in range(4):
        nt,mt=i>>1,i&1
        for qq in range(4):
            for r in (0,2): x=16*i+4*qq+r; e.i(f"v_pk_fma_f32 v[{ACF+x}:{ACF+x+1}], v[{GV}:{GV+1}], v[{ACS+x}:{ACS+x+1}], v[{ACF+x}:{ACF+x+1}] op_sel:[{mt},0,0] op_sel_hi:[{mt},1,1]")
            e.ds(f"ds_write_b128 v{WA+4*mt+qq}, v[{ACF+16*i+4*qq}:{ACF+16*i+4*qq+3}] offset:{nt*128}","rw")
    e.wait(lg="*"); e.i("s_barrier"); stamp(e,c,36)
    for cc in range(2):
        for p in range(8): e.ds(f"ds_read_b128 v[{32*cc+4*p}:{32*cc+4*p+3}], v{T if cc else GV+5} offset:{p*2048}",("rr",cc,p))
    for cc in range(2):
        o=232+4*cc
        for p in range(8):
            e.wait(lg=("rr",cc,p))
            for r in (0,2): e.i(f"v_pk_add_f32 v[{o+r}:{o+r+1}], v[{o+r}:{o+r+1}], v[{32*cc+4*p+r}:{32*cc+4*p+r+1}]")
        e.i(f"s_mov_b32 s3, {cc*65536}")
        e.vm(f"buffer_store_dwordx4 v[{o}:{o+3}], v{GV+4}, s[24:27], s3 offen {c.ost}")
def gen(c):
    e=E(); common_prologue(e,c); body(e,c)
    hdr=open("cdna_kernels/"+KN+".s.ref").read().split("; Override")[0]
    n=KN+"_kernel"
    return hdr+"; @launch grid=(256,1,1) block=(512,1,1) lds=163840\n"+'.amdgcn_target "amdgcn-amd-amdhsa--gfx950"\n.text\n'+khead(n)+"\n".join(e.L)+'\n.section .rodata,"a"\n'+kdesc(n)
if __name__=="__main__":
    import sys
    c=Cfg(); c.merged=1; c.ld="sc1"; c.rot2=1; c.fiss=11; c.ost=""; c.nh=6; c.ta=1; c.tb=-1; c.dp=2; c.fi=4*11+3; c.fc=4*12+1; c.p14=5; c.cdef=0; c.tbs='00112233'; c.he=4; c.b7=2; c.f2i=4; c.f2c=6; c.f3i=8; c.f3c=9; c.pg=2; c.stg=0; c.xb=''; c.pp=0; c.tc=0; c.rot=2; c.ibar=1; c.fakeh=0; c.noc=0; c.p2=1; c.lp=8; c.pk=1; c.nod=0; c.nof=0; c.prio=0
    for a in sys.argv[2:]:
        k,v=a.split("="); setattr(c,k,int(v) if v.lstrip("-").isdigit() and k not in ('tl','tas','tbs') else v)
    open(sys.argv[1],"w").write(gen(c))
```

```python
from gen1 import *
import gen3
from gen3 import kinfo,KN,kdesc,khead,TA,TS,BS,CR,setup_early,bdma_f,bdma_s,fl_load,fl_issue,fl_check,VW,VC,FLV,FLA
ACF=64; ACS=0; HB=128; VH1=214; RT0=215; RTT=216; RC=202; GV=206; WA=222
def mf(a,A,B,z): return f"v_mfma_f32_32x32x16_bf16 v[{a}:{a+15}], v[{A}:{A+3}], v[{B}:{B+3}], "+("0" if z else f"v[{a}:{a+15}]")
def hreg(c,n): return 8*n if n<7 else HB+8*((n-7)%c.nh)
def hload(e,c,n,mts=(0,1)):
    k,a,b=kinfo(n); hb=hreg(c,n)
    e.i(f"s_add_u32 s74, s{100+b}, s{TA[a]}" if k=="f" else f"s_add_u32 s74, s{80+a}, s{TS[b]}")
    if c.fakeh and n>=7: e.i(f"s_add_u32 s74, s100, s{TA[n%7]}")
    for mt in mts: e.vm(f"buffer_load_dwordx4 v[{hb+4*mt}:{hb+4*mt+3}], v{VH1 if mt else L16}, s[28:31], s74 offen {c.ld}",("h2",n))
def hdm(e,c,n):
    k,a,b=kinfo(n); hb=hreg(c,n)
    p=f"s_add_u32 s74, s{100+b}, s{TA[a]}" if k=="f" else f"s_add_u32 s74, s{80+a}, s{TS[b]}"
    return [DM(e,p,f"buffer_load_dwordx4 v[{hb+4*mt}:{hb+4*mt+3}], v{VH1 if mt else L16}, s[28:31], s74 offen {c.ld}",("h2",n)) for mt in range(2)]
def touchC(e):
    e.i(f"s_cmp_eq_u32 s70, 0\ns_cselect_b32 s20, s46, s48\ns_cselect_b32 s21, s47, s49\ns_lshr_b32 s3, s2, 3\ns_lshl_b32 s3, s3, 2\ns_add_u32 s3, s3, s7\ns_lshl_b32 s3, s3, 5")
    e.i(f"v_and_b32 v{T+12}, 31, v{LANE}\nv_add_u32 v{T+12}, s3, v{T+12}\nv_lshlrev_b32 v{T+12}, 7, v{T+12}")
    e.vm(f"global_load_dword v{FB+31}, v{T+12}, s[20:21]","t")
def setup_e2(e):
    t0,t1=T+10,T+12
    e.i(f"v_add_u32 v{VH1}, {176*1024}, v{L16}\nv_lshrrev_b32 v{t0}, 5, v{LANE}\nv_bfe_u32 v{t1}, v{LANE}, 2, 2\nv_lshl_add_u32 v{t0}, v{t0}, 2, v{t1}\nv_lshl_add_u32 v{t0}, v{t0}, 7, s71\nv_bfe_u32 v{t1}, v{LANE}, 3, 1\nv_lshl_add_u32 v{t0}, v{t1}, 6, v{t0}")
    e.i(f"v_bfe_u32 v{t1}, v{LANE}, 4, 1\nv_lshl_add_u32 v{t0}, v{t1}, 5, v{t0}\nv_and_b32 v{t1}, 3, v{LANE}\nv_lshl_add_u32 v{RT0}, v{t1}, 3, v{t0}")
def bread_f(n,dst):
    L=[f"v_xor_b32 v216, 64, v215",f"v_add_u32 v212, 0x10000, v215",f"v_add_u32 v213, 0x10000, v216",f"v_add_u32 v217, 0x20000, v215",f"v_add_u32 v221, 0x20000, v216"] if n==0 else []
    return L+[f"ds_read_b64_tr_b16 v[{dst+4*nt+2*h}:{dst+4*nt+2*h+1}], v{[(215,216),(212,213),(217,221)][BS[n]>>16][nt]} offset:{(BS[n]&65535)+h*1024}" for nt in range(2) for h in range(2)]
def setup_late(e,c):
    e.i("s_and_b32 s3, s4, 1\ns_cmp_eq_u32 s3, 1\ns_cselect_b32 s20, s48, s46\ns_cselect_b32 s21, s49, s47\ns_mov_b32 s22, 0x80000\ns_mov_b32 s23, 0x20000")
    e.i("s_lshl_b32 s3, s3, 5\ns_add_u32 s3, s3, 112\ns_lshr_b32 s82, s4, 1\ns_lshl_b32 s74, s82, 2\ns_add_u32 s3, s3, s74\ns_lshl_b32 s3, s3, 10\ns_add_u32 s80, s73, s3\ns_lshl_b32 s82, s82, 7")
    e.i("s_lshr_b32 s3, s99, 2\ns_xor_b32 s3, s3, s98\ns_and_b32 s3, s3, 1")
    e.i("s_lshl_b32 s74, s3, 14\ns_xor_b32 s81, s74, 0x4000\ns_add_u32 s81, s81, s80\ns_add_u32 s80, s80, s74\ns_lshl_b32 s74, s3, 9\ns_xor_b32 s83, s74, 0x200\ns_add_u32 s83, s83, s82\ns_add_u32 s82, s82, s74")
    r8,t0=VC+1,T+12
    e.i(f"v_lshrrev_b32 v{r8}, 3, v{LANE}\nv_lshrrev_b32 v{t0}, 4, v{LANE}\nv_xor_b32 v{t0}, v{t0}, v{LANE}\nv_and_b32 v{t0}, 7, v{t0}\ns_lshl_b32 s3, s99, 16\nv_lshl_add_u32 v{t0}, v{t0}, 4, s3\nv_lshl_add_u32 v{VC}, v{r8}, 10, v{t0}\nv_xor_b32 v{VC+1}, 64, v{VC}")
def publish(e,c):
    e.wait(vm="hs"); e.wait(vm=("h",1)); e.i("s_barrier"); flag_store(e,2,5,6); stamp(e,c,33)
def g0_groups(c):
    G=[]
    for n in range(22):
        k,a,bb=kinfo(n); b=FB+8*(n&1)
        if c.stg and 7<=n<14: b=8*(n-7)
        rd=[] if c.stg and 7<=n<14 else bread_f(n,b) if k=="f" else [f"ds_read_b128 v[{b+4*nt}:{b+4*nt+3}], v{RC+bb} offset:{CR[a][nt]*16384}" for nt in range(2)]
        G.append((14,n,rd,[mf((ACF if k=="f" else ACS)+(2*nt+mt)*16,b+4*nt,hreg(c,n)+4*mt,n in (0,14)) for nt in range(2) for mt in range(2)]))
    return G
def run_groups(e,c,groups,g0,g1,F,D,pre,sync,per):
    RQ=Fill()
    def reads(g):
        s,gi=groups[g][:2]
        if s==14:
            while any(getattr(x,'t',None)==('b',gi) for x in D.q): D.run(1)
            RQ.add(lambda: e.wait(vm=("b",gi)))
        for r in groups[g][2]: RQ.add(lambda r=r: e.ds(r,("r",g)) if r.startswith("ds_") else e.i(r))
    if g0==0 or groups[g0-1] is None: reads(g0); RQ.flush()
    for g in range(g0,g1):
        s,gi,rd,mfs=groups[g]
        nf = g+1<g1 and groups[g+1][1]==0 and groups[g+1][0]<14
        e.wait(lg=("r",g))
        pre(s,gi)
        if s==14:
            while any(getattr(x,'t',None)==('h2',gi) for x in D.q): D.run(1)
            e.wait(vm=("h2",gi))
        if c.prio==1: e.i('s_setprio 1')
        for k,m in enumerate(mfs):
            if k==(c.pre_bar if nf else 0) and g+1<g1:
                if nf: sync(groups[g+1][0])
                reads(g+1)
            dr=D.q and (s<11 or s==14 or k%c.dp==0)
            if dr and c.pp and hasattr(D.q[0],"pre"):
                ents=[D.q.pop(0)]
                if c.pp==2 and D.q and hasattr(D.q[0],"pre") and len(D.q)>3-k: ents.append(D.q.pop(0))
                l1,l2=e.label(),e.label(); st=e.state()
                e.i(f"s_cbranch_vccnz {l1}")
                for x in ents: x()
                e.i(f"{l1}:"); e.i(m); e.i(f"s_cbranch_vccz {l2}"); e.restore(st)
                for x in ents: x()
                e.i(f"{l2}:"); RQ.run(c.spread if k<3 else 99)
            else:
                if dr and hasattr(D.q[0],"pre"): D.q[0].pre()
                e.i(m); RQ.run(c.spread if k<3 else 99)
                if dr: D.run(1)
            if c.nof and 10<=s<14: F.q=[]
            if not D.q or s>=11: F.run(per(s))
            if c.prio==1 and k==3: e.i('s_setprio 0')
def body(e,c):
    groups=p1_prologue(e,c)+g0_groups(c)
    F=Fill(); D=Fill(); z={}
    def sync(s):
        if s in (11+c.slow,12+c.slow): F.flush()
        if s<=11: D.flush()
        if s==11: cnt_check(e); e.wait(vm=("h",0))
        e.wait(vm=("d",s),lg="*"); e.i("s_barrier"); stamp(e,c,2+s)
        if s==0:
            sk=e.label(); e.i(f"s_cmp_lg_u32 s6, 15\ns_cbranch_scc1 {sk}\ns_cmp_lg_u32 s4, 0\ns_cbranch_scc1 {sk}\ns_lshl_b32 s3, s5, 2\nv_mov_b32 v1, s3\nv_mov_b32 v2, 1\ns_mov_b64 exec, 1\nglobal_store_dword v1, v2, s[66:67] sc1\ns_mov_b64 exec, -1\n{sk}:")
        if s==8-c.dist: e.i(f"v_add_u32 v{DW}, 128, v{DW}\nv_add_u32 v{DW+1}, 128, v{DW+1}")
        if s==8:
            a,b2=T+8,T+9
            e.i(f"v_and_b32 v{a}, 15, v{LANE}\nv_lshrrev_b32 v{b2}, 5, v{LANE}\nv_lshrrev_b32 v{RA}, 1, v{a}\nv_xor_b32 v{b2}, v{b2}, v{RA}\ns_lshl_b32 s3, s70, 11\nv_lshl_add_u32 v{a}, v{a}, 7, s3\nv_lshl_add_u32 v{a}, v{b2}, 4, v{a}\nv_bfe_u32 v{b2}, v{LANE}, 4, 1\nv_lshl_add_u32 v{RA}, v{b2}, 16, v{a}")
            for k in range(1,4): e.i(f"v_xor_b32 v{RA+k}, {32*k}, v{RA}")
            e.i(f"v_mul_u32_u24 v{b2}, {65536-1024}, v{b2}\nv_subrev_u32 v{b2}, 0x10000, v{b2}\nv_lshrrev_b32 v{a}, 5, v{LANE}\nv_lshlrev_b32 v{a}, 10, v{a}\nv_sub_u32 v{b2}, v{b2}, v{a}\nv_add_u32 v{RW}, v{RW}, v{b2}\nv_add_u32 v{RW+1}, v{RW+1}, v{b2}")
        if s==11: flag_store(e,1,5,6); setup_e2(e)
        for s2 in ([s+c.dist] if s else range(c.pre,c.dist+1)):
            for f in ([] if s2>13 else p1_dmas(e,s2)): D.add(f)
        for w in range(8):
            if c.tl[w]==chr(97+s): D.add(lambda w=w: touch1(e,w,*TCH_L[w]))
            if c.ta>=0 and c.tas[w]!='x' and s==c.ta+int(c.tas[w]): D.add(lambda w=w: touch1(e,w,*TCH_A[w]))
            if c.tb>=0 and c.tbs[w]!='x' and s==c.tb+int(c.tbs[w]): D.add(lambda w=w: touch1(e,w,*TCH_B[w]))
        if s>=11:
            for n in {11:(0,1),12:(2,3),13:(4,5,6)}[s]:
                for f in bdma_f(e,n): D.add(f)
    def hq(n0,n1):
        for n in range(n0,n1):
            D.q+=hdm(e,c,n)
    def stage(n):
        e.wait(vm=("b",n))
        for r in bread_f(n,8*(n-7)): e.ds(r,("st",n))
    def p2z(n):
        if n in (2,4): D.q+=bdma_f(e,8+n)+bdma_f(e,9+n)
    def p2common(n):
        if c.stg==2: return
        if not c.stg:
            for f in {2:lambda: bdma_f(e,10)+bdma_f(e,11),4:lambda: bdma_f(e,12)+bdma_f(e,13),7:lambda: bdma_s(e,0,0),9:lambda: bdma_s(e,0,1),12:lambda: bdma_s(e,1,0),14:lambda: bdma_s(e,1,1)}.get(n if n<7 or not c.noc else -1,lambda: [])(): D.add(f)
            return
        if n==1: setup_late(e,c)
        for q in {2:(7,8),5:(10,11),7:(12,13),6:(9,)}.get(n,()): stage(q)
        for f in {2:lambda: bdma_f(e,10)+bdma_f(e,11),3:lambda: bdma_s(e,0,1),4:lambda: bdma_f(e,12)+bdma_f(e,13),6:lambda: bdma_s(e,1,0),7:lambda: bdma_s(e,0,0),8:lambda: bdma_s(e,1,1)}.get(n,lambda: [])(): D.add(f)
        if n==8: e.wait(lg="*")
    def pre(s,gi):
        if (s,gi)==(8,1): ffn_epi(e,c,F,0)
        if (s,gi)==(9,0): cnt_issue(e)
        if (s,gi)==(10,0):
            F.flush(); z["st"]=e.state(); e.i("s_cmp_ge_u32 s6, 14\ns_cbranch_scc1 Lzpath"); setup_early(e,c)
        if (s,gi)==(10,1): ssm_a(e,F)
        if (s,gi)==(11+c.slow,0): ssm_b(e,F)
        if (s,gi)==(c.fi//4,c.fi%4): D.add(lambda: fl_issue(e,2))
        if (s,gi)==(c.fc//4,c.fc%4): D.add(lambda: fl_check(e,1)); hq(0,c.he)
        if (s,gi)==(13,0): F.add(lambda: poll_prep(e))
        if (s,gi)==(13,3): F.add(lambda: poll_issue(e))
        if s<14: return
        n=gi
        if c.stg==2:
            if n==0:
                stamp(e,c,16); D.flush(); F.flush(); e.i("s_barrier"); stamp(e,c,24)
                hq(c.he,7); D.q+=bdma_f(e,7)+bdma_f(e,8)
            p2z(n)
            if n==c.eg:
                if n==0: e.i("s_nop 7")
                ffn_epi(e,c,F,1,1); F.add(lambda: poll_check(e)); ssm_c(e,c,F); F.add(lambda: D.q.extend(bdma_f(e,9)))
                while F.q: F.run(c.lp); D.run(1)
                stamp(e,c,19)
            if n==c.pg: e.wait(vm="hs"); e.wait(vm=("h",1)); e.i("s_barrier"); flag_store(e,3,5,6); stamp(e,c,33)
            if n==7:
                D.flush(); e.i("Lp1end:"); setup_late(e,c)
                for f in bdma_s(e,0,0): f()
                for q in range(7,14):
                    stage(q)
                    if q in (8,11,13):
                        e.wait(lg=("st",q))
                        for f in bdma_s(e,*{8:(0,1),11:(1,0),13:(1,1)}[q]): f()
                    if q==c.fiss: fl_issue(e)
                gen3.setup_late2(e,c); fl_check(e,3); stamp(e,c,34)
                for q in range(7,7+c.nh): hload(e,c,q)
                gen3.epi_loads(e,c)
            if n>=8 and n-1+c.nh<22: hload(e,c,n-1+c.nh)
            if n!=15: return
        if n==0 and not c.stg:
            stamp(e,c,16); D.flush(); F.flush(); e.i("s_barrier"); stamp(e,c,24); e.i("s_nop 7")
            ffn_epi(e,c,F,1,1); F.flush(); stamp(e,c,17)
            for f in bdma_f(e,7)[:c.b7]: f()
            if c.tc==1: touchC(e)
            poll_check(e); ssm_c(e,c,F); F.flush(); stamp(e,c,19)
            if c.tc==2: touchC(e)
            e.wait(vm=("h",1)); e.i("s_barrier"); flag_store(e,2,5,6); stamp(e,c,33)
            hq(c.he,7); D.flush()
            for f in bdma_f(e,7)[c.b7:]+bdma_f(e,8)+bdma_f(e,9): f()
            e.i("Lp1end:"); setup_late(e,c); gen3.setup_late2(e,c)
            if c.prio==3: sk=e.label(); e.i(f"s_cmp_eq_u32 s70, 0\ns_cbranch_scc1 {sk}\ns_setprio 1\n{sk}:")
        if n==0 and c.stg:
            stamp(e,c,16); D.flush(); F.flush(); e.i("s_barrier"); stamp(e,c,24)
            for f in bdma_f(e,7)+bdma_f(e,8): D.add(f)
            hq(c.he,7)
            if not c.b7: e.i("s_nop 7")
            D.run(c.b7); ffn_epi(e,c,F,1,1)
            while F.q: F.run(c.lp); D.run(1)
            D.flush(); stamp(e,c,17); poll_check(e); ssm_c(e,c,F); F.add(lambda: D.q.extend(bdma_f(e,9)))
        if n==c.p2 and c.stg: e.wait(vm=("h",1)); e.i("s_barrier"); flag_store(e,2,5,6); stamp(e,c,33)
        if n==4 and c.stg: F.flush(); D.flush(); stamp(e,c,19); e.i("Lp1end:"); gen3.setup_late2(e,c)
        p2common(n)
        if n==c.pg: e.wait(vm="hs"); e.i("s_barrier"); flag_store(e,3,5,6)
        if c.stg==2: n=-15
        if n==c.f2i or n==c.f3i: fl_issue(e)
        if n==c.f2c:
            stamp(e,c,32); fl_check(e,2); stamp(e,c,34)
            for q in range(7,7+c.nh): hload(e,c,q)
        if n==c.f3c: stamp(e,c,38); fl_check(e,3); stamp(e,c,39)
        if n>=8 and n-1+c.nh<14: hq(n-1+c.nh,n+c.nh)
        if n>=c.f3c:
            hq(14 if n==c.f3c else n-1+c.nh,min(22,n+c.nh))
        if n==c.f3c+1: gen3.epi_loads(e,c)
        if n in (2,4,7,8,10,12,14,16,18,20): stamp(e,c,40+n)
        if abs(n)==15:
            F.add(lambda: e.wait(vm="g"))
            for mt in range(2): F.text(e,f"v_sub_f32 v{T+10+mt}, 1.0, v{GV+mt}\nv_cvt_pk_bf16_f32 v{T+10+mt}, v{T+10+mt}, v{T+10+mt}\nv_lshlrev_b32 v{T+10+mt}, 16, v{T+10+mt}")
            for i in range(64): F.text(e,f"v_mul_f32 v{ACF+i}, v{T+10+((i>>4)&1)}, v{ACF+i}")
            for cc in range(2):
                xs=T+6+2*cc; o=232+4*cc
                for kk in range(2):
                    F.text(e,f"v_lshlrev_b32 v{T}, 16, v{xs+kk}\nv_lshlrev_b32 v{T+1}, 16, v{T+4+kk}\nv_and_b32 v{T+2}, 0xffff0000, v{xs+kk}\nv_and_b32 v{T+3}, 0xffff0000, v{T+4+kk}\nv_mul_f32 v{T}, v{T}, v{T+1}\nv_mul_f32 v{T+2}, v{T+2}, v{T+3}\nv_cvt_pk_bf16_f32 v{T}, v{T}, v{T+2}")
                    F.text(e,f"v_lshlrev_b32 v{o+2*kk}, 16, v{T}\nv_and_b32 v{o+2*kk+1}, 0xffff0000, v{T}\nv_mul_f32 v{o+2*kk}, v{o+2*kk}, v{GV+2+cc}\nv_mul_f32 v{o+2*kk+1}, v{o+2*kk+1}, v{GV+2+cc}")
            F.text(e,f"v_add_u32 v{T}, 0x10000, v{GV+5}")
    per=lambda s: {8:5,9:6,10:5,11:5,12:5,13:5,14:c.p14}.get(s,4)
    ssm_consts(e,F); F.flush(); e.i(SETV); sync(0)
    run_groups(e,c,groups,0,len(groups),F,D,pre,sync,per)
    F.flush(); D.flush()
    final(e,c); prof_end(e,c,0); dbg_time(e,c); e.i("Lexit:\ns_endpgm")
    e.restore(z["st"]); e.i("Lzpath:\ns_nop 7\ns_nop 3")
    ssm_a(e,F); F.flush(); cnt_check(e); e.wait(vm="*",lg="*"); e.i("s_barrier"); stamp(e,c,16)
    ssm_b(e,F); F.flush(); poll_prep(e); gate(e,c); stamp(e,c,17); poll_issue(e); poll_check(e); ssm_c(e,c,F); F.flush(); stamp(e,c,19)
    e.wait(vm="*",lg="*"); e.i("s_barrier"); flag_store(e,3,5,6); stamp(e,c,33)
    setup_early(e,c); setup_e2(e); fl_issue(e,2)
    for n in range(10):
        for f in bdma_f(e,n): f()
    fl_check(e,1); hq(0,7); D.flush()
    G=[None]+g0_groups(c)[:7]
    if c.stg==2: run_groups(e,c,G,1,8,F,D,lambda s,n: p2z(n),None,per); D.flush(); G[5]=(0,0,[])
    elif c.stg: run_groups(e,c,G,1,5,F,D,lambda s,n: p2common(n),None,per); D.flush()
    e.wait(vm=("b",4))
    for r in G[5 if c.stg else 1][2]: e.i(r)
    e.wait(vm="*",lg="*"); e.i("s_branch Lp1end")
def final(e,c):
    srd(e,24,64,2048*2048); stamp(e,c,35); e.i("s_nop 7")
    for i in range(4):
        nt,mt=i>>1,i&1
        for qq in range(4):
            for r in (0,2): x=16*i+4*qq+r; e.i(f"v_pk_fma_f32 v[{ACF+x}:{ACF+x+1}], v[{GV}:{GV+1}], v[{ACS+x}:{ACS+x+1}], v[{ACF+x}:{ACF+x+1}] op_sel:[{mt},0,0] op_sel_hi:[{mt},1,1]")
            e.ds(f"ds_write_b128 v{WA+4*mt+qq}, v[{ACF+16*i+4*qq}:{ACF+16*i+4*qq+3}] offset:{nt*128}","rw")
    e.wait(lg="*"); e.i("s_barrier"); stamp(e,c,36)
    for cc in range(2):
        for p in range(8): e.ds(f"ds_read_b128 v[{32*cc+4*p}:{32*cc+4*p+3}], v{T if cc else GV+5} offset:{p*2048}",("rr",cc,p))
    for cc in range(2):
        o=232+4*cc
        for p in range(8):
            e.wait(lg=("rr",cc,p))
            for r in (0,2): e.i(f"v_pk_add_f32 v[{o+r}:{o+r+1}], v[{o+r}:{o+r+1}], v[{32*cc+4*p+r}:{32*cc+4*p+r+1}]")
        e.i(f"s_mov_b32 s3, {cc*65536}")
        e.vm(f"buffer_store_dwordx4 v[{o}:{o+3}], v{GV+4}, s[24:27], s3 offen {c.ost}")
def gen(c):
    e=E(); common_prologue(e,c); body(e,c)
    hdr=open("cdna_kernels/"+KN+".s.ref").read().split("; Override")[0]
    n=KN+"_kernel"
    return hdr+"; @launch grid=(256,1,1) block=(512,1,1) lds=163840\n"+'.amdgcn_target "amdgcn-amd-amdhsa--gfx950"\n.text\n'+khead(n)+"\n".join(e.L)+'\n.section .rodata,"a"\n'+kdesc(n)
if __name__=="__main__":
    import sys
    c=Cfg(); c.merged=1; c.ld="sc1"; c.rot2=1; c.fiss=11; c.ost="sc1"; c.nh=6; c.ta=-1; c.tb=-1; c.dp=1; c.dist=2; c.fi=4*11+3; c.fc=4*12+1; c.p14=5; c.cdef=0; c.tbs='00112233'; c.he=7; c.b7=2; c.f2i=4; c.f2c=6; c.f3i=8; c.f3c=9; c.pg=3; c.stg=2; c.xb=''; c.pp=0; c.eg=0; c.tc=0; c.rot=3; c.ibar=1; c.fakeh=0; c.noc=0; c.p2=1; c.lp=12; c.pk=1; c.nod=0; c.nof=0; c.prio=0
    for a in sys.argv[2:]:
        k,v=a.split("="); setattr(c,k,int(v) if v.lstrip("-").isdigit() and k not in ('tl','tas','tbs') else v)
    open(sys.argv[1],"w").write(gen(c))
```

```python
from gen1 import *
import gen3
from gen3 import kinfo,KN,kdesc,khead,TA,TS,BS,CR,setup_early,bdma_f,bdma_s,fl_load,fl_issue,fl_check,VW,VC,FLV,FLA
ACF=64; ACS=0; HB=128; VH1=214; RT0=215; RTT=216; RC=202; GV=206; WA=222
def mf(a,A,B,z): return f"v_mfma_f32_32x32x16_bf16 v[{a}:{a+15}], v[{A}:{A+3}], v[{B}:{B+3}], "+("0" if z else f"v[{a}:{a+15}]")
def hreg(c,n): return 8*n if n<7 else HB+8*((n-7)%c.nh)
def hload(e,c,n,mts=(0,1)):
    k,a,b=kinfo(n); hb=hreg(c,n)
    e.i(f"s_add_u32 s74, s{100+b}, s{TA[a]}" if k=="f" else f"s_add_u32 s74, s{80+a}, s{TS[b]}")
    if c.fakeh and n>=7: e.i(f"s_add_u32 s74, s100, s{TA[n%7]}")
    for mt in mts: e.vm(f"buffer_load_dwordx4 v[{hb+4*mt}:{hb+4*mt+3}], v{VH1 if mt else L16}, s[28:31], s74 offen {c.ld}",("h2",n))
def hdm(e,c,n):
    k,a,b=kinfo(n); hb=hreg(c,n)
    p=f"s_add_u32 s74, s{100+b}, s{TA[a]}" if k=="f" else f"s_add_u32 s74, s{80+a}, s{TS[b]}"
    return [DM(e,p,f"buffer_load_dwordx4 v[{hb+4*mt}:{hb+4*mt+3}], v{VH1 if mt else L16}, s[28:31], s74 offen {c.ld}",("h2",n)) for mt in range(2)]
def touchC(e):
    e.i(f"s_cmp_eq_u32 s70, 0\ns_cselect_b32 s20, s46, s48\ns_cselect_b32 s21, s47, s49\ns_lshr_b32 s3, s2, 3\ns_lshl_b32 s3, s3, 2\ns_add_u32 s3, s3, s7\ns_lshl_b32 s3, s3, 5")
    e.i(f"v_and_b32 v{T+12}, 31, v{LANE}\nv_add_u32 v{T+12}, s3, v{T+12}\nv_lshlrev_b32 v{T+12}, 7, v{T+12}")
    e.vm(f"global_load_dword v{FB+31}, v{T+12}, s[20:21]","t")
def setup_e2(e):
    t0,t1=T+10,T+12
    e.i(f"v_add_u32 v{VH1}, {176*1024}, v{L16}\nv_lshrrev_b32 v{t0}, 5, v{LANE}\nv_bfe_u32 v{t1}, v{LANE}, 2, 2\nv_lshl_add_u32 v{t0}, v{t0}, 2, v{t1}\nv_lshl_add_u32 v{t0}, v{t0}, 7, s71\nv_bfe_u32 v{t1}, v{LANE}, 3, 1\nv_lshl_add_u32 v{t0}, v{t1}, 6, v{t0}")
    e.i(f"v_bfe_u32 v{t1}, v{LANE}, 4, 1\nv_lshl_add_u32 v{t0}, v{t1}, 5, v{t0}\nv_and_b32 v{t1}, 3, v{LANE}\nv_lshl_add_u32 v{RT0}, v{t1}, 3, v{t0}")
def bread_f(n,dst):
    L=[f"v_xor_b32 v216, 64, v215",f"v_add_u32 v212, 0x10000, v215",f"v_add_u32 v213, 0x10000, v216",f"v_add_u32 v217, 0x20000, v215",f"v_add_u32 v221, 0x20000, v216"] if n==0 else []
    return L+[f"ds_read_b64_tr_b16 v[{dst+4*nt+2*h}:{dst+4*nt+2*h+1}], v{[(215,216),(212,213),(217,221)][BS[n]>>16][nt]} offset:{(BS[n]&65535)+h*1024}" for nt in range(2) for h in range(2)]
def setup_late(e,c):
    e.i("s_and_b32 s3, s4, 1\ns_cmp_eq_u32 s3, 1\ns_cselect_b32 s20, s48, s46\ns_cselect_b32 s21, s49, s47\ns_mov_b32 s22, 0x80000\ns_mov_b32 s23, 0x20000")
    e.i("s_lshl_b32 s3, s3, 5\ns_add_u32 s3, s3, 112\ns_lshr_b32 s82, s4, 1\ns_lshl_b32 s74, s82, 2\ns_add_u32 s3, s3, s74\ns_lshl_b32 s3, s3, 10\ns_add_u32 s80, s73, s3\ns_lshl_b32 s82, s82, 7")
    e.i("s_lshr_b32 s3, s99, 2\ns_xor_b32 s3, s3, s98\ns_and_b32 s3, s3, 1")
    e.i("s_lshl_b32 s74, s3, 14\ns_xor_b32 s81, s74, 0x4000\ns_add_u32 s81, s81, s80\ns_add_u32 s80, s80, s74\ns_lshl_b32 s74, s3, 9\ns_xor_b32 s83, s74, 0x200\ns_add_u32 s83, s83, s82\ns_add_u32 s82, s82, s74")
    r8,t0=VC+1,T+12
    e.i(f"v_lshrrev_b32 v{r8}, 3, v{LANE}\nv_lshrrev_b32 v{t0}, 4, v{LANE}\nv_xor_b32 v{t0}, v{t0}, v{LANE}\nv_and_b32 v{t0}, 7, v{t0}\ns_lshl_b32 s3, s99, 16\nv_lshl_add_u32 v{t0}, v{t0}, 4, s3\nv_lshl_add_u32 v{VC}, v{r8}, 10, v{t0}\nv_xor_b32 v{VC+1}, 64, v{VC}")
def publish(e,c):
    e.wait(vm="hs"); e.wait(vm=("h",1)); e.i("s_barrier"); flag_store(e,2,5,6); stamp(e,c,33)
def g0_groups(c):
    G=[]
    for n in range(22):
        k,a,bb=kinfo(n); b=FB+8*(n&1)
        if c.stg and 7<=n<14: b=8*(n-7)
        rd=[] if c.stg and 7<=n<14 else bread_f(n,b) if k=="f" else [f"ds_read_b128 v[{b+4*nt}:{b+4*nt+3}], v{RC+bb} offset:{CR[a][nt]*16384}" for nt in range(2)]
        G.append((14,n,rd,[mf((ACF if k=="f" else ACS)+(2*nt+mt)*16,b+4*nt,hreg(c,n)+4*mt,n in (0,14)) for nt in range(2) for mt in range(2)]))
    return G
def run_groups(e,c,groups,g0,g1,F,D,pre,sync,per):
    RQ=Fill()
    def reads(g):
        s,gi=groups[g][:2]
        if s==14:
            while any(getattr(x,'t',None)==('b',gi) for x in D.q): D.run(1)
            RQ.add(lambda: e.wait(vm=("b",gi)))
        for r in groups[g][2]: RQ.add(lambda r=r: e.ds(r,("r",g)) if r.startswith("ds_") else e.i(r))
    if g0==0 or groups[g0-1] is None: reads(g0); RQ.flush()
    for g in range(g0,g1):
        s,gi,rd,mfs=groups[g]
        nf = g+1<g1 and groups[g+1][1]==0 and groups[g+1][0]<14
        e.wait(lg=("r",g))
        pre(s,gi)
        if s==14:
            while any(getattr(x,'t',None)==('h2',gi) for x in D.q): D.run(1)
            e.wait(vm=("h2",gi))
        if c.prio==1: e.i('s_setprio 1')
        for k,m in enumerate(mfs):
            if k==(c.pre_bar if nf else 0) and g+1<g1:
                if nf: sync(groups[g+1][0])
                reads(g+1)
            dr=D.q and (s<11 or s==14 or k%c.dp==0)
            if dr and c.pp and hasattr(D.q[0],"pre"):
                ents=[D.q.pop(0)]
                if c.pp==2 and D.q and hasattr(D.q[0],"pre") and len(D.q)>3-k: ents.append(D.q.pop(0))
                l1,l2=e.label(),e.label(); st=e.state()
                e.i(f"s_cbranch_vccnz {l1}")
                for x in ents: x()
                e.i(f"{l1}:"); e.i(m); e.i(f"s_cbranch_vccz {l2}"); e.restore(st)
                for x in ents: x()
                e.i(f"{l2}:"); RQ.run(c.spread if k<3 else 99)
            else:
                if dr and hasattr(D.q[0],"pre"): D.q[0].pre()
                e.i(m); RQ.run(c.spread if k<3 else 99)
                if dr: D.run(1)
            if c.nof and 10<=s<14: F.q=[]
            if not D.q or s>=11: F.run(per(s))
            if c.prio==1 and k==3: e.i('s_setprio 0')
def body(e,c):
    groups=p1_prologue(e,c)+g0_groups(c)
    F=Fill(); D=Fill(); z={}
    def sync(s):
        if s in (11+c.slow,12+c.slow): F.flush()
        if s<=11: D.flush()
        if s==11: cnt_check(e); e.wait(vm=("h",0))
        e.wait(vm=("d",s),lg="*"); e.i("s_barrier"); stamp(e,c,2+s)
        if s==0:
            sk=e.label(); e.i(f"s_cmp_lg_u32 s6, 15\ns_cbranch_scc1 {sk}\ns_cmp_lg_u32 s4, 0\ns_cbranch_scc1 {sk}\ns_lshl_b32 s3, s5, 2\nv_mov_b32 v1, s3\nv_mov_b32 v2, 1\ns_mov_b64 exec, 1\nglobal_store_dword v1, v2, s[66:67] sc1\ns_mov_b64 exec, -1\n{sk}:")
        if s==8-c.dist: e.i(f"v_add_u32 v{DW}, 128, v{DW}\nv_add_u32 v{DW+1}, 128, v{DW+1}")
        if s==8:
            a,b2=T+8,T+9
            e.i(f"v_and_b32 v{a}, 15, v{LANE}\nv_lshrrev_b32 v{b2}, 5, v{LANE}\nv_lshrrev_b32 v{RA}, 1, v{a}\nv_xor_b32 v{b2}, v{b2}, v{RA}\ns_lshl_b32 s3, s70, 11\nv_lshl_add_u32 v{a}, v{a}, 7, s3\nv_lshl_add_u32 v{a}, v{b2}, 4, v{a}\nv_bfe_u32 v{b2}, v{LANE}, 4, 1\nv_lshl_add_u32 v{RA}, v{b2}, 16, v{a}")
            for k in range(1,4): e.i(f"v_xor_b32 v{RA+k}, {32*k}, v{RA}")
            e.i(f"v_mul_u32_u24 v{b2}, {65536-1024}, v{b2}\nv_subrev_u32 v{b2}, 0x10000, v{b2}\nv_lshrrev_b32 v{a}, 5, v{LANE}\nv_lshlrev_b32 v{a}, 10, v{a}\nv_sub_u32 v{b2}, v{b2}, v{a}\nv_add_u32 v{RW}, v{RW}, v{b2}\nv_add_u32 v{RW+1}, v{RW+1}, v{b2}")
        if s==11: flag_store(e,1,5,6); setup_e2(e)
        for s2 in ([s+c.dist] if s else range(c.pre,c.dist+1)):
            for f in ([] if s2>13 else p1_dmas(e,s2)): D.add(f)
        for w in range(8):
            if c.tl[w]==chr(97+s): D.add(lambda w=w: touch1(e,w,*TCH_L[w]))
            if c.ta>=0 and c.tas[w]!='x' and s==c.ta+int(c.tas[w]): D.add(lambda w=w: touch1(e,w,*TCH_A[w]))
            if c.tb>=0 and c.tbs[w]!='x' and s==c.tb+int(c.tbs[w]): D.add(lambda w=w: touch1(e,w,*TCH_B[w]))
        if s>=11:
            for n in {11:(0,1),12:(2,3),13:(4,5,6)}[s]:
                for f in bdma_f(e,n): D.add(f)
    def hq(n0,n1):
        for n in range(n0,n1):
            D.q+=hdm(e,c,n)
    def stage(n):
        e.wait(vm=("b",n))
        for r in bread_f(n,8*(n-7)): e.ds(r,("st",n))
    def p2z(n):
        if n in (2,4): D.q+=bdma_f(e,8+n)+bdma_f(e,9+n)
    def p2common(n):
        if c.stg==2: return
        if not c.stg:
            for f in {2:lambda: bdma_f(e,10)+bdma_f(e,11),4:lambda: bdma_f(e,12)+bdma_f(e,13),7:lambda: bdma_s(e,0,0),9:lambda: bdma_s(e,0,1),12:lambda: bdma_s(e,1,0),14:lambda: bdma_s(e,1,1)}.get(n if n<7 or not c.noc else -1,lambda: [])(): D.add(f)
            return
        if n==1: setup_late(e,c)
        for q in {2:(7,8),5:(10,11),7:(12,13),6:(9,)}.get(n,()): stage(q)
        for f in {2:lambda: bdma_f(e,10)+bdma_f(e,11),3:lambda: bdma_s(e,0,1),4:lambda: bdma_f(e,12)+bdma_f(e,13),6:lambda: bdma_s(e,1,0),7:lambda: bdma_s(e,0,0),8:lambda: bdma_s(e,1,1)}.get(n,lambda: [])(): D.add(f)
        if n==8: e.wait(lg="*")
    def pre(s,gi):
        if (s,gi)==(8,1): ffn_epi(e,c,F,0)
        if (s,gi)==(9,0): cnt_issue(e)
        if (s,gi)==(10,0):
            F.flush(); z["st"]=e.state(); e.i("s_cmp_ge_u32 s6, 14\ns_cbranch_scc1 Lzpath"); setup_early(e,c)
        if (s,gi)==(10,1): ssm_a(e,F)
        if (s,gi)==(11+c.slow,0): ssm_b(e,F)
        if (s,gi)==(c.fi//4,c.fi%4): D.add(lambda: fl_issue(e,2))
        if (s,gi)==(c.fc//4,c.fc%4): D.add(lambda: fl_check(e,1)); hq(0,c.he)
        if (s,gi)==(13,0): F.add(lambda: poll_prep(e))
        if (s,gi)==(13,3): F.add(lambda: poll_issue(e))
        if s<14: return
        n=gi
        if c.stg==2:
            if n==0:
                stamp(e,c,16); D.flush(); F.flush(); e.i("s_barrier"); stamp(e,c,24)
                hq(c.he,7); D.q+=bdma_f(e,7)+bdma_f(e,8)
            p2z(n)
            if n==c.eg:
                if n==0: e.i("s_nop 7")
                ffn_epi(e,c,F,1,1); F.add(lambda: poll_check(e)); ssm_c(e,c,F); F.add(lambda: D.q.extend(bdma_f(e,9)))
                while F.q: F.run(c.lp); D.run(1)
                stamp(e,c,19)
            if n==c.pg: e.wait(vm="hs"); e.wait(vm=("h",1)); e.i("s_barrier"); flag_store(e,3,5,6); stamp(e,c,33)
            if n==7:
                D.flush(); e.i("Lp1end:"); setup_late(e,c)
                if c.eqb==2: e.i("s_setprio 2")
                for f in bdma_s(e,0,0): f()
                for q in range(7,14):
                    stage(q)
                    if q in (8,11,13):
                        e.wait(lg=("st",q))
                        for f in bdma_s(e,*{8:(0,1),11:(1,0),13:(1,1)}[q]): f()
                    if q==c.fiss: fl_issue(e)
                gen3.setup_late2(e,c)
                if c.eqb==1: e.i('s_barrier')
                if c.eqb==2: e.i('s_setprio 0')
                fl_check(e,3); stamp(e,c,34)
                for q in range(7,7+c.nh): hload(e,c,q)
                gen3.epi_loads(e,c)
            if n>=8 and n-1+c.nh<22: hload(e,c,n-1+c.nh)
            if n!=15: return
        if n==0 and not c.stg:
            stamp(e,c,16); D.flush(); F.flush(); e.i("s_barrier"); stamp(e,c,24); e.i("s_nop 7")
            ffn_epi(e,c,F,1,1); F.flush(); stamp(e,c,17)
            for f in bdma_f(e,7)[:c.b7]: f()
            if c.tc==1: touchC(e)
            poll_check(e); ssm_c(e,c,F); F.flush(); stamp(e,c,19)
            if c.tc==2: touchC(e)
            e.wait(vm=("h",1)); e.i("s_barrier"); flag_store(e,2,5,6); stamp(e,c,33)
            hq(c.he,7); D.flush()
            for f in bdma_f(e,7)[c.b7:]+bdma_f(e,8)+bdma_f(e,9): f()
            e.i("Lp1end:"); setup_late(e,c); gen3.setup_late2(e,c)
            if c.prio==3: sk=e.label(); e.i(f"s_cmp_eq_u32 s70, 0\ns_cbranch_scc1 {sk}\ns_setprio 1\n{sk}:")
        if n==0 and c.stg:
            stamp(e,c,16); D.flush(); F.flush(); e.i("s_barrier"); stamp(e,c,24)
            for f in bdma_f(e,7)+bdma_f(e,8): D.add(f)
            hq(c.he,7)
            if not c.b7: e.i("s_nop 7")
            D.run(c.b7); ffn_epi(e,c,F,1,1)
            while F.q: F.run(c.lp); D.run(1)
            D.flush(); stamp(e,c,17); poll_check(e); ssm_c(e,c,F); F.add(lambda: D.q.extend(bdma_f(e,9)))
        if n==c.p2 and c.stg: e.wait(vm=("h",1)); e.i("s_barrier"); flag_store(e,2,5,6); stamp(e,c,33)
        if n==4 and c.stg: F.flush(); D.flush(); stamp(e,c,19); e.i("Lp1end:"); gen3.setup_late2(e,c)
        p2common(n)
        if n==c.pg: e.wait(vm="hs"); e.i("s_barrier"); flag_store(e,3,5,6)
        if c.stg==2: n=-15
        if n==c.f2i or n==c.f3i: fl_issue(e)
        if n==c.f2c:
            stamp(e,c,32); fl_check(e,2); stamp(e,c,34)
            for q in range(7,7+c.nh): hload(e,c,q)
        if n==c.f3c: stamp(e,c,38); fl_check(e,3); stamp(e,c,39)
        if n>=8 and n-1+c.nh<14: hq(n-1+c.nh,n+c.nh)
        if n>=c.f3c:
            hq(14 if n==c.f3c else n-1+c.nh,min(22,n+c.nh))
        if n==c.f3c+1: gen3.epi_loads(e,c)
        if n in (2,4,7,8,10,12,14,16,18,20): stamp(e,c,40+n)
        if abs(n)==15:
            F.add(lambda: e.wait(vm="g"))
            for mt in range(2): F.text(e,f"v_sub_f32 v{T+10+mt}, 1.0, v{GV+mt}\nv_cvt_pk_bf16_f32 v{T+10+mt}, v{T+10+mt}, v{T+10+mt}\nv_lshlrev_b32 v{T+10+mt}, 16, v{T+10+mt}")
            for i in range(64): F.text(e,f"v_mul_f32 v{ACF+i}, v{T+10+((i>>4)&1)}, v{ACF+i}")
            for cc in range(2):
                xs=T+6+2*cc; o=232+4*cc
                for kk in range(2):
                    F.text(e,f"v_lshlrev_b32 v{T}, 16, v{xs+kk}\nv_lshlrev_b32 v{T+1}, 16, v{T+4+kk}\nv_and_b32 v{T+2}, 0xffff0000, v{xs+kk}\nv_and_b32 v{T+3}, 0xffff0000, v{T+4+kk}\nv_mul_f32 v{T}, v{T}, v{T+1}\nv_mul_f32 v{T+2}, v{T+2}, v{T+3}\nv_cvt_pk_bf16_f32 v{T}, v{T}, v{T+2}")
                    F.text(e,f"v_lshlrev_b32 v{o+2*kk}, 16, v{T}\nv_and_b32 v{o+2*kk+1}, 0xffff0000, v{T}\nv_mul_f32 v{o+2*kk}, v{o+2*kk}, v{GV+2+cc}\nv_mul_f32 v{o+2*kk+1}, v{o+2*kk+1}, v{GV+2+cc}")
            F.text(e,f"v_add_u32 v{T}, 0x10000, v{GV+5}")
    per=lambda s: {8:5,9:6,10:5,11:5,12:5,13:5,14:c.p14}.get(s,4)
    ssm_consts(e,F); F.flush(); e.i(SETV); sync(0)
    run_groups(e,c,groups,0,len(groups),F,D,pre,sync,per)
    F.flush(); D.flush()
    final(e,c); prof_end(e,c,0); dbg_time(e,c); e.i("Lexit:\ns_endpgm")
    e.restore(z["st"]); e.i("Lzpath:\ns_nop 7\ns_nop 3")
    ssm_a(e,F); F.flush(); cnt_check(e); e.wait(vm="*",lg="*"); e.i("s_barrier"); stamp(e,c,16)
    ssm_b(e,F); F.flush(); poll_prep(e); gate(e,c); stamp(e,c,17); poll_issue(e); poll_check(e); ssm_c(e,c,F); F.flush(); stamp(e,c,19)
    e.wait(vm="*",lg="*"); e.i("s_barrier"); flag_store(e,3,5,6); stamp(e,c,33)
    setup_early(e,c); setup_e2(e); fl_issue(e,2)
    for n in range(10):
        for f in bdma_f(e,n): f()
    fl_check(e,1); hq(0,7); D.flush()
    G=[None]+g0_groups(c)[:7]
    if c.stg==2: run_groups(e,c,G,1,8,F,D,lambda s,n: p2z(n),None,per); D.flush(); G[5]=(0,0,[])
    elif c.stg: run_groups(e,c,G,1,5,F,D,lambda s,n: p2common(n),None,per); D.flush()
    e.wait(vm=("b",4))
    for r in G[5 if c.stg else 1][2]: e.i(r)
    e.wait(vm="*",lg="*"); e.i("s_branch Lp1end")
def final(e,c):
    srd(e,24,64,2048*2048); stamp(e,c,35); e.i("s_nop 7")
    for i in range(4):
        nt,mt=i>>1,i&1
        for qq in range(4):
            for r in (0,2): x=16*i+4*qq+r; e.i(f"v_pk_fma_f32 v[{ACF+x}:{ACF+x+1}], v[{GV}:{GV+1}], v[{ACS+x}:{ACS+x+1}], v[{ACF+x}:{ACF+x+1}] op_sel:[{mt},0,0] op_sel_hi:[{mt},1,1]")
            e.ds(f"ds_write_b128 v{WA+4*mt+qq}, v[{ACF+16*i+4*qq}:{ACF+16*i+4*qq+3}] offset:{nt*128}","rw")
    e.wait(lg="*"); e.i("s_barrier"); stamp(e,c,36)
    for cc in range(2):
        for p in range(8): e.ds(f"ds_read_b128 v[{32*cc+4*p}:{32*cc+4*p+3}], v{T if cc else GV+5} offset:{p*2048}",("rr",cc,p))
    for cc in range(2):
        o=232+4*cc
        for p in range(8):
            e.wait(lg=("rr",cc,p))
            for r in (0,2): e.i(f"v_pk_add_f32 v[{o+r}:{o+r+1}], v[{o+r}:{o+r+1}], v[{32*cc+4*p+r}:{32*cc+4*p+r+1}]")
        e.i(f"s_mov_b32 s3, {cc*65536}")
        e.vm(f"buffer_store_dwordx4 v[{o}:{o+3}], v{GV+4}, s[24:27], s3 offen {c.ost}")
def gen(c):
    e=E(); common_prologue(e,c); body(e,c)
    hdr=open("cdna_kernels/"+KN+".s.ref").read().split("; Override")[0]
    n=KN+"_kernel"
    return hdr+"; @launch grid=(256,1,1) block=(512,1,1) lds=163840\n"+'.amdgcn_target "amdgcn-amd-amdhsa--gfx950"\n.text\n'+khead(n)+"\n".join(e.L)+'\n.section .rodata,"a"\n'+kdesc(n)
if __name__=="__main__":
    import sys
    c=Cfg(); c.merged=1; c.ld="sc1"; c.rot2=1; c.fiss=11; c.ost="sc1"; c.nh=6; c.ta=1; c.tb=-1; c.dp=1; c.dist=2; c.fi=4*11+3; c.fc=4*12+1; c.p14=5; c.cdef=0; c.tbs='00112233'; c.he=7; c.b7=2; c.f2i=4; c.f2c=6; c.f3i=8; c.f3c=9; c.pg=3; c.stg=2; c.xb=''; c.pp=0; c.eqb=0; c.eg=0; c.tc=0; c.rot=3; c.ibar=1; c.fakeh=0; c.noc=0; c.p2=1; c.lp=12; c.pk=1; c.nod=0; c.nof=0; c.prio=0
    for a in sys.argv[2:]:
        k,v=a.split("="); setattr(c,k,int(v) if v.lstrip("-").isdigit() and k not in ('tl','tas','tbs') else v)
    open(sys.argv[1],"w").write(gen(c))
```

```python
from emit import *
S_OFF=0xC20000; G_OFF=0xC10000; PROF=0xD00000; WS_SIZE=0xE00000
SCR=131072
LOG2E="0x3fb8aa3b"; NLOG2E="0xbfb8aa3b"
X=0; AF=128; AS=160; FB=176; RA=208; RW=212; DX=214; DW=216; DB=218; L16=219; LANE=220; SA=221
LAM=222; L8=224; L16P=226; L32=228; L128=230; L512=232; L1024=234; LQ=236; LP=238; CO=240; T=242; PV=255
class Cfg:
    prof=0; pre_bar=1; merged=0; st="sc1"; nodma=0; nofill=0; noread=0; nomfma=0; few=0; noatom=0; spread=4; rot=1; leak=-1; bal=0; rt=1; tl='xxxxxxxx'; tas='22006788'; ibar=0; ta=-1; tb=-1; tz=0; tzs=1; znt=0; slow=1; lpace=14; cin=0; hearly=7; dbgt=0; dist=3; pre=2
def stamp(e,c,idx,real=False):
    if c.leak>=0:
        if idx in (0,c.leak): e.i('s_memrealtime s[92:93]'); e.wait(lg='*'); e.i(f'v_writelane_b32 v{PV}, s92, {1 if idx else 0}')
        return
    if not c.prof and not (c.dbgt and idx<2): return
    if c.few==3 and 32<=idx<62: pass
    elif c.few>=2 and idx not in (0,1,2,10,12,16,24,19,33,34,35,36,62,63): return
    elif c.few and idx not in (0,1,2,3,6,10,12,13,14,15,16,17,18,19,24,32,33,34,35,36,37,62,63): return
    e.i(f"{'s_memrealtime' if real or c.rt else 's_memtime'} s[92:93]"); e.wait(lg="*"); e.i(f"v_writelane_b32 v{PV}, s92, {idx}")
def prof_end(e,c,kid):
    if not c.prof: return
    stamp(e,c,62); stamp(e,c,63,True)
    e.i(f"s_lshl_b32 s92, s2, 3\ns_add_u32 s92, s92, s4\ns_lshl_b32 s92, s92, 8\ns_add_u32 s92, s92, {PROF+kid*0x80000}")
    e.i(f"v_mbcnt_lo_u32_b32 v254, -1, 0\nv_mbcnt_hi_u32_b32 v254, -1, v254\nv_lshlrev_b32 v254, 2, v254")
    e.vm(f"buffer_store_dword v{PV}, v254, s[28:31], s92 offen")
def srd(e,d,p,n):
    e.i(f"s_mov_b32 s{d}, s{p}\ns_mov_b32 s{d+1}, s{p+1}\ns_mov_b32 s{d+2}, {n}\ns_mov_b32 s{d+3}, 0x20000")
def tau(e,d,s,t):
    e.i(f"v_and_b32 v{d}, 4, v{s}\nv_lshlrev_b32 v{d}, 2, v{d}\nv_and_or_b32 v{d}, v{s}, 3, v{d}\nv_lshrrev_b32 v{t}, 3, v{s}\nv_lshl_or_b32 v{d}, v{t}, 2, v{d}")
def cmac(d,a,b):
    return f"v_fmac_f32 v{d[0]}, v{a[0]}, v{b[0]}\nv_fmac_f32 v{d[1]}, v{a[0]}, v{b[1]}\nv_fma_f32 v{d[0]}, -v{a[1]}, v{b[1]}, v{d[0]}\nv_fmac_f32 v{d[1]}, v{a[1]}, v{b[0]}\n"
def P(x): return (x,x+1)
def csq(d,s,t): return f"v_mul_f32 v{t}, v{s+1}, v{s+1}\nv_mul_f32 v{t+1}, v{s}, v{s+1}\nv_fma_f32 v{d}, v{s}, v{s}, -v{t}\nv_add_f32 v{d+1}, v{t+1}, v{t+1}\n"
def cis(d,la,rev,t):
    return f"v_rndne_f32 v{t}, v{rev}\nv_exp_f32 v{t+1}, v{la}\nv_sub_f32 v{t}, v{rev}, v{t}\nv_cos_f32 v{d}, v{t}\nv_sin_f32 v{d+1}, v{t}\ns_nop 0\nv_mul_f32 v{d}, v{d}, v{t+1}\nv_mul_f32 v{d+1}, v{d+1}, v{t+1}\n"
def combine(ee,A,C,La,Lb):
    s=f"v_mov_b32 v{A}, v{ee}\nv_mov_b32 v{A+1}, v{ee+1}\ns_nop 1\nv_permlane16_swap_b32 v{A}, v{ee}\nv_permlane16_swap_b32 v{A+1}, v{ee+1}\ns_nop 0\n"
    s+=cmac(P(ee),P(La),P(A))
    s+=f"v_mov_b32 v{C}, v{ee}\nv_mov_b32 v{C+1}, v{ee+1}\ns_nop 1\nv_permlane32_swap_b32 v{C}, v{ee}\nv_permlane32_swap_b32 v{C+1}, v{ee+1}\ns_nop 0\n"
    s+=cmac(P(ee),P(Lb),P(C))
    return s
def dbg_time(e,c):
    if c.leak>=0:
        stamp(e,c,62); sk=e.label(); lp=e.label()
        e.i(f's_cmp_ge_u32 s2, 8\ns_cbranch_scc1 {sk}\ns_cmp_lg_u32 s4, 0\ns_cbranch_scc1 {sk}\nv_readlane_b32 s10, v255, 0\nv_readlane_b32 s11, v255, 1\ns_memrealtime s[12:13]\ns_waitcnt lgkmcnt(0)\ns_sub_u32 s10, s11, s10\ns_lshl_b32 s10, s10, 2\ns_min_u32 s10, s10, 20000\n{lp}:\ns_memrealtime s[14:15]\ns_waitcnt lgkmcnt(0)\ns_sub_u32 s14, s14, s12\ns_cmp_lt_u32 s14, s10\ns_cbranch_scc1 {lp}\n{sk}:')
    if not c.dbgt: return
    sk=e.label()
    e.i(f"s_cmp_ge_u32 s2, 16\ns_cbranch_scc1 {sk}\ns_cmp_lg_u32 s4, 0\ns_cbranch_scc1 {sk}\ns_waitcnt vmcnt(0)\ns_memrealtime s[92:93]\ns_memtime s[10:11]\ns_waitcnt lgkmcnt(0)\nv_readlane_b32 s93, v255, 0\nv_readlane_b32 s11, v255, 1\ns_nop 3\ns_sub_u32 s92, s92, s93\ns_sub_u32 s10, s10, s11\ns_cmp_ge_u32 s2, 8\ns_cselect_b32 s92, s10, s92\ns_lshl_b32 s3, s2, 2\nv_mov_b32 v1, s3\nv_mov_b32 v2, s92\ns_mov_b64 exec, 1\nglobal_store_dword v1, v2, s[66:67] sc1\n{sk}:")
TV=T+10; TJ=T+12
def touch1(e,w,p,sc,nl,kind,TV=TV):
    nx=e.label()
    e.i(f"s_cmp_lg_u32 s4, {w}\ns_cbranch_scc1 {nx}\n{sc}\nv_min_u32 v{TV}, {nl-1}, v{LANE}\nv_add_u32 v{TV}, s3, v{TV}")
    if kind=="g1": e.i(f"v_lshlrev_b32 v{TV}, 8, v{TV}\nv_add_u32 v{TV}, 128, v{TV}")
    elif kind=="lin": e.i(f"v_lshlrev_b32 v{TV}, 7, v{TV}")
    else: e.i(f"v_lshrrev_b32 v{TJ}, 9, v{TV}\nv_lshl_add_u32 v{TV}, v{TJ}, 9, v{TV}\nv_add_u32 v{TV}, {512 if kind=='w2b' else 0}, v{TV}\nv_lshlrev_b32 v{TV}, 7, v{TV}")
    e.i(f"s_mov_b32 m0, {SCR+16384+4096}\ns_nop 0\nglobal_load_lds_dword v{TV}, s[{p}:{p+1}]\n{nx}:")
_a="s_mul_i32 s3, s2, 28"; _b="s_lshl_b32 s3, s2, 4"
TCH_A=[(12,_a,28,"g1"),(16,_a+"\ns_add_u32 s3, s3, 4",28,"g1"),(20,_b,16,"lin"),(24,_b,16,"lin"),(60,_a,28,"w2a"),(60,_a,28,"w2b"),(46,_b,16,"lin"),(48,_b,16,"lin")]
_c="s_mul_i32 s3, s2, 56"
TCH_L=[(8,"s_lshl_b32 s3, s2, 6",64,"lin"),(12,_c,56,"lin"),(16,_c+"\ns_add_u32 s3, s3, 8",56,"lin"),(20,_b,16,"lin"),(24,_b,16,"lin"),(60,_c,56,"lin"),(46,_b,16,"lin"),(48,_b,16,"lin")]
TCH_B=[(60,f"s_lshr_b32 s3, s2, 3\ns_mul_i32 s3, s3, 224\ns_add_u32 s3, s3, {56*w}",56,"w2b") for w in range(4)]+[(46+2*(w>>1),f"s_lshr_b32 s3, s2, 3\ns_lshl_b32 s3, s3, 7\ns_add_u32 s3, s3, {64*(w&1)}",64,"lin") for w in range(4)]
def common_prologue(e,c):
    e.i("s_cmp_ge_u32 s2, 256\ns_cbranch_scc1 Lexit")
    e.i("s_load_dwordx16 s[36:51], s[0:1], 0\ns_load_dwordx16 s[52:67], s[0:1], 64\ns_load_dwordx2 s[68:69], s[0:1], 128")
    e.i(f"v_lshrrev_b32 v1, 6, v0\nv_and_b32 v{LANE}, 63, v0\nv_readfirstlane_b32 s4, v1\nv_lshlrev_b32 v{L16}, 4, v{LANE}")
def dma(e,ldsb,ldso,voff,srdn,soff,tag,sbase=None):
    e.i(f"s_add_u32 m0, s{ldsb}, {ldso}")
    e.i(f"s_mov_b32 s74, {soff}" if sbase is None else f"s_add_u32 s74, s{sbase}, {soff}")
    e.vm(f"buffer_load_dwordx4 v{voff}, s[{srdn}:{srdn+3}], s74 offen lds",tag)
XS=[38,39,40,41,42,43,44,45]; WT=[50,51,54,55,56,57,58,59]
class DM:
    def __init__(s,e,pre,ld,tag): s.e,s.p,s.l,s.t,s.done=e,pre,ld,tag,False
    def pre(s):
        if s.p and not s.done: s.e.i(s.p); s.done=True
    def __call__(s):
        if s.p and not s.done:
            s.e.i(s.p)
            if s.p.split("\n")[-1].startswith("s_add_u32 m0"): s.e.i("s_nop 0")
        s.e.vm(s.l,s.t)
def ldl(voff,srdn,sreg,imm=0): return f"buffer_load_dwordx4 v{voff}, s[{srdn}:{srdn+3}], s{sreg} offen "+(f"offset:{imm} " if imm else "")+"lds"
def p1_dmas(e,s):
    sl=(s%4)*16384; tg=("d",s); L=[]
    m0=lambda b,o: f"s_add_u32 m0, s{b}, {o}"
    if s<8:
        for q in range(2): L.append(DM(e,None if q else m0(71,sl),ldl(DX+q,8,XS[s] if s else 96,1024*q),tg))
        for mt in range(2): L.append(DM(e,None if mt else m0(71,65536+sl),ldl(DW+mt,12+4*mt,WT[s] if s else 94,1024*mt),tg))
    elif s<10:
        for cp in range(2):
            for sc in range(2): L.append(DM(e,m0(73,cp*65536+sl+sc*4096),ldl(DB,20+4*cp,98+2*(s-8)+sc),tg))
    elif s<14:
        for h in range(2):
            for mt in range(2): L.append(DM(e,m0(72,mt*65536+sl+h*8192-1024*mt),ldl(DW+mt,12+4*mt,WT[2*(s-10)+h],1024*mt),tg))
    return L
def ffn_epi(e,c,F,G,pk=0):
    for t in range(2):
        a=AF+16*t; R=range(8)
        if pk:
            P2=lambda x: f"v[{x}:{x+1}]"; Q=range(a,a+8,2)
            s="".join(f"v_pk_mul_f32 {P2(r+8)}, {P2(r)}, {P2(r+8)}\nv_pk_mul_f32 {P2(r)}, {P2(r)}, s[84:85]\n" for r in Q)
            s+="".join(f"v_exp_f32 v{a+r}, v{a+r}\n" for r in R)+"".join(f"v_pk_add_f32 {P2(r)}, {P2(r)}, s[86:87]\n" for r in Q)
            s+="".join(f"v_rcp_f32 v{a+r}, v{a+r}\n" for r in R)+"".join(f"v_pk_mul_f32 {P2(r+8)}, {P2(r)}, {P2(r+8)}\n" for r in Q)
            if t==0: s=f"s_mov_b32 s84, {NLOG2E}\ns_mov_b32 s85, {NLOG2E}\ns_mov_b32 s86, 1.0\ns_mov_b32 s87, 1.0\n"+s
            F.text(e,s); R=[]
        F.text(e,"".join(f"v_mul_f32 v{a+8+r}, v{a+r}, v{a+8+r}\n" for r in R))
        for op in (f"v_mul_f32 v{{0}}, {NLOG2E}, v{{0}}","v_exp_f32 v{0}, v{0}","v_add_f32 v{0}, 1.0, v{0}","v_rcp_f32 v{0}, v{0}"):
            F.text(e,"".join(op.format(a+r)+"\n" for r in R))
        F.text(e,"".join(f"v_mul_f32 v{a+8+r}, v{a+r}, v{a+8+r}\n" for r in R))
        F.text(e,"".join(f"v_cvt_pk_bf16_f32 v{a+k}, v{a+8+2*k}, v{a+9+2*k}\n" for k in range(4)))
        F.add(lambda t=t,a=a: (e.i(f"s_add_u32 s74, s75, {(4*G+t)*1024}"), e.vm(f"buffer_store_dwordx4 v[{a}:{a+3}], v{L16}, s[32:35], s74 offen {c.st}",("h",G))))
def ssm_consts(e,F):
    lr,li,ld=T,T+1,T+2; t=T+4
    F.add(lambda: e.wait(vm="c"))
    s=f"v_lshlrev_b32 v{lr}, 16, v{lr}\nv_lshlrev_b32 v{li}, 16, v{li}\nv_lshlrev_b32 v{ld}, 16, v{ld}\nv_mul_f32 v{ld}, {LOG2E}, v{ld}\nv_exp_f32 v{ld}, v{ld}\ns_nop 0\nv_cvt_pk_bf16_f32 v{ld}, v{ld}, v{ld}\nv_lshlrev_b32 v{ld}, 16, v{ld}\n"
    la,rev=T+6,T+7
    s+=f"v_mul_f32 v{la}, v{ld}, v{lr}\nv_mul_f32 v{rev}, v{ld}, v{li}\nv_mul_f32 v{la}, {LOG2E}, v{la}\nv_mul_f32 v{rev}, 0.15915494, v{rev}\n"
    s+=cis(LAM,la,rev,t)
    s+=f"v_mul_f32 v{t}, v{lr}, v{lr}\nv_fmac_f32 v{t}, v{li}, v{li}\nv_rcp_f32 v{t}, v{t}\nv_add_f32 v{t+1}, -1.0, v{LAM}\nv_add_f32 v{t}, v{t}, v{t}\n"
    s+=f"v_mul_f32 v{CO}, v{t+1}, v{lr}\nv_mul_f32 v{CO+1}, v{LAM+1}, v{lr}\nv_fmac_f32 v{CO}, v{LAM+1}, v{li}\nv_fma_f32 v{CO+1}, -v{t+1}, v{li}, v{CO+1}\nv_mul_f32 v{CO}, v{CO}, v{t}\nv_mul_f32 v{CO+1}, v{CO+1}, v{t}\n"
    n=T+3
    s+=f"v_lshrrev_b32 v{n}, 4, v{LANE}\nv_lshlrev_b32 v{n}, 3, v{n}\nv_cvt_f32_u32 v{n}, v{n}\nv_mul_f32 v{lr}, v{la}, v{n}\nv_mul_f32 v{li}, v{rev}, v{n}\n"+cis(LQ,lr,li,t)
    s+=f"s_lshl_b32 s3, s7, 5\nv_cvt_f32_u32 v{ld}, s3\nv_add_f32 v{n}, v{n}, v{ld}\nv_mul_f32 v{lr}, v{la}, v{n}\nv_mul_f32 v{li}, v{rev}, v{n}\n"+cis(LP,lr,li,t)
    s+=csq(L8,LAM,t)+csq(L8,L8,t)+csq(L8,L8,t)+csq(L16P,L8,t)+csq(L32,L16P,t)+csq(L128,L32,t)+csq(L128,L128,t)+csq(L512,L128,t)+csq(L512,L512,t)+csq(L1024,L512,t)
    F.text(e,s)
PP=RA
def ssm_a(e,F):
    s="".join(f"v_permlane16_swap_b32 v{AS+r}, v{AS+8+r}\n" for r in range(8))
    for r in range(8):
        zr,zi=AS+r,AS+8+r; t=T+2*(r&1)
        s+=f"v_mul_f32 v{t}, v{CO+1}, v{zi}\nv_mul_f32 v{t+1}, v{CO+1}, v{zr}\nv_fma_f32 v{zr}, v{CO}, v{zr}, -v{t}\nv_fma_f32 v{zi}, v{CO}, v{zi}, v{t+1}\n"
    prev=(AS,AS+8)
    for r in range(1,8):
        n=P(T+2*(r&1))
        s+=f"v_fma_f32 v{n[0]}, v{LAM}, v{prev[0]}, v{AS+r}\nv_fma_f32 v{n[1]}, v{LAM}, v{prev[1]}, v{AS+8+r}\nv_fma_f32 v{n[0]}, -v{LAM+1}, v{prev[1]}, v{n[0]}\nv_fmac_f32 v{n[1]}, v{LAM+1}, v{prev[0]}\n"
        prev=n
    ee=T+2; A=T+4; C=T+6
    s+=combine(ee,A,C,L8,L16P)
    F.text(e,s)
    F.add(lambda: e.ds(f"ds_write_b64 v{SA}, v[{ee}:{ee+1}]","sw"))
    s=f"v_cndmask_b32 v{A}, 0, v{A}, s[76:77]\nv_cndmask_b32 v{A+1}, 0, v{A+1}, s[76:77]\nv_cndmask_b32 v{PP}, v{A}, v{C}, s[78:79]\nv_cndmask_b32 v{PP+1}, v{A+1}, v{C+1}, s[78:79]\n"
    s+=cmac(P(A),P(L8),P(C))+f"v_cndmask_b32 v{PP}, v{PP}, v{A}, s[80:81]\nv_cndmask_b32 v{PP+1}, v{PP+1}, v{A+1}, s[80:81]\n"
    F.text(e,s)
def ssm_b(e,F):
    W=T; R=T+8; ad=T+10
    F.text(e,f"s_lshl_b32 s3, s7, 7\nv_subrev_u32 v{ad}, s3, v{SA}")
    for k in range(4): F.add(lambda k=k: e.ds(f"ds_read_b64 v[{W+2*k}:{W+2*k+1}], v{ad} offset:{128*k}","sr"))
    F.add(lambda: e.wait(lg="sr"))
    s=cmac(P(W+2),P(L32),P(W))+cmac(P(W+4),P(L32),P(W+2))+cmac(P(W+6),P(L32),P(W+4))
    F.text(e,s)
    for k in range(2): F.add(lambda k=k: e.i(f"v_cmp_eq_u32 vcc, -1, v{W+6+k}\nv_mov_b32 v{ad}, 0x7fc00000\ns_nop 0\nv_cndmask_b32 v{W+6+k}, v{W+6+k}, v{ad}, vcc"))
    s=f"v_and_b32 v{ad}, 15, v{LANE}\nv_lshlrev_b32 v{ad}, 3, v{ad}\ns_lshl_b32 s3, s5, 8\ns_lshl_b32 s74, s70, 7\ns_add_u32 s3, s3, s74\n"
    s+=f"s_cmp_eq_u32 s7, 0\ns_cselect_b32 s3, s3, 0x10000\nv_add_u32 v{ad}, s3, v{ad}\n"
    F.text(e,s)
    F.add(lambda: (e.i("s_mov_b64 exec, 0xffff"), e.vm(f"buffer_store_dwordx2 v[{W+6}:{W+7}], v{ad}, s[88:91], 0 offen sc1","pub"), e.i("s_mov_b64 exec, -1")))
    s=""
    for k in range(2):
        s+=f"v_cndmask_b32 v{R+k}, 0, v{W+k}, s[82:83]\nv_cndmask_b32 v{R+k}, v{R+k}, v{W+2+k}, s[84:85]\nv_cndmask_b32 v{R+k}, v{R+k}, v{W+4+k}, s[86:87]\n"
    F.text(e,s+cmac(P(PP),P(LQ),P(R)))
SETV="s_cmp_eq_u32 s70, 1\ns_cselect_b64 vcc, -1, 0"
def spin(e,reg,load,cmp,mask):
    ok=e.label(); lp=e.label()
    e.i(f"s_mov_b32 s94, 0\n{lp}:\n{cmp}\ns_add_u32 s94, s94, 1\ns_nop 2\ns_and_b32 s3, vcc_lo, {mask}\ns_cbranch_scc0 {ok}\ns_cmp_ge_u32 s94, 0x8000\ns_cbranch_scc1 {ok}\ns_sleep 2")
    e.i(f"{load}\ns_waitcnt vmcnt(0)\ns_branch {lp}\n{ok}:")
CNT=DX
def cnt_load(): return f"global_load_dword v{CNT}, v{CNT+1}, s[66:67] sc1"
def cnt_issue(e): e.i(f"v_and_b32 v{CNT+1}, 15, v{LANE}\nv_lshlrev_b32 v{CNT+1}, 2, v{CNT+1}"); e.vm(cnt_load(),"cnt")
def cnt_check(e): e.wait(vm="cnt"); spin(e,CNT,cnt_load(),f"v_cmp_eq_u32 vcc, 0, v{CNT}","0xffff")
def flag_store(e,val,sm,sj):
    sk=e.label(); e.i(f"s_cmp_lg_u32 s4, 0\ns_cbranch_scc1 {sk}\ns_lshl_b32 s3, s{sm}, 11\ns_add_u32 s3, s3, s{sj}\ns_lshl_b32 s3, s3, 2\ns_add_u32 s3, s3, {S_OFF+4096}\nv_mov_b32 v{T+12}, {val}\ns_mov_b64 exec, 1\nbuffer_store_dword v{T+12}, off, s[28:31], s3 sc1\ns_mov_b64 exec, -1\n{sk}:")
U=T; UB=RA+3
def poll_issue(e,track=True):
    for k in range(4):
        e.i(f"v_add_u32 v{U+2*k}, {256*k}, v{UB}")
    for k in range(4):
        t=f"buffer_load_dwordx2 v[{U+2*k}:{U+2*k+1}], v{U+2*k}, s[88:91], 0 offen sc1"
        e.vm(t,"poll") if track else e.i(t)
def poll_prep(e):
    e.i(f"v_lshrrev_b32 v{UB}, 4, v{LANE}\nv_lshlrev_b32 v{UB}, 10, v{UB}\nv_and_b32 v{U}, 15, v{LANE}\nv_lshl_add_u32 v{UB}, v{U}, 3, v{UB}")
    e.i(f"s_sub_u32 s3, s5, 16\ns_lshl_b32 s3, s3, 8\ns_lshl_b32 s74, s70, 7\ns_add_u32 s3, s3, s74\nv_add_u32 v{UB}, s3, v{UB}")
def poll_check(e):
    e.wait(vm="poll"); ok=e.label(); lp=e.label(); t=T+8
    e.i(f"s_mov_b32 s94, 0\n{lp}:\nv_max3_u32 v{t}, v{U}, v{U+1}, v{U+2}\nv_max3_u32 v{t}, v{t}, v{U+3}, v{U+4}\nv_max3_u32 v{t}, v{t}, v{U+5}, v{U+6}\nv_max_u32 v{t}, v{t}, v{U+7}")
    e.i(f"v_cmp_eq_u32 vcc, -1, v{t}\ns_add_u32 s94, s94, 1\ns_nop 3\ns_cbranch_vccz {ok}\ns_cmp_ge_u32 s94, 0x8000\ns_cbranch_scc1 {ok}\ns_sleep 1")
    poll_issue(e,False); e.i(f"s_waitcnt vmcnt(0)\ns_branch {lp}\n{ok}:")
def ssm_c(e,c,F):
    s=cmac(P(U+2),P(L128),P(U))+cmac(P(U+4),P(L128),P(U+2))+cmac(P(U+6),P(L128),P(U+4))
    s+=combine(U+6,U,U+2,L512,L1024)+cmac(P(PP),P(LP),P(U+6))
    prev=P(PP)
    for r in range(8):
        n=(AS+r,AS+8+r); s+=cmac(n,P(LAM),prev); prev=n
    wa,ra,t=T+8,T+9,T+10
    s+=f"v_and_b32 v{wa}, 15, v{LANE}\nv_lshlrev_b32 v{wa}, 6, v{wa}\nv_and_or_b32 v{wa}, v{LANE}, 48, v{wa}\ns_add_u32 s3, s71, {SCR}\nv_add_u32 v{wa}, s3, v{wa}\n"
    s+=f"v_lshrrev_b32 v{ra}, 5, v{LANE}\nv_bfe_u32 v{t}, v{LANE}, 2, 2\nv_lshl_add_u32 v{ra}, v{ra}, 3, v{t}\nv_lshlrev_b32 v{ra}, 6, v{ra}\nv_and_b32 v{t}, 1, v{LANE}\nv_lshl_add_u32 v{ra}, v{t}, 5, v{ra}\n"
    s+=f"v_and_or_b32 v{ra}, v{LANE}, 16, v{ra}\nv_and_b32 v{t}, 2, v{LANE}\nv_lshl_add_u32 v{ra}, v{t}, 2, v{ra}\ns_add_u32 s3, s71, {SCR}\nv_add_u32 v{ra}, s3, v{ra}\n"
    for k in range(4): s+=f"v_cvt_pk_bf16_f32 v{T+k}, v{AS+2*k}, v{AS+2*k+1}\n"
    for k in range(4): s+=f"v_cvt_pk_bf16_f32 v{T+4+k}, -v{AS+8+2*k}, -v{AS+9+2*k}\n"
    F.text(e,s)
    for cp in range(2): F.add(lambda cp=cp: e.ds(f"ds_write_b128 v{wa}, v[{T+4*cp}:{T+4*cp+3}] offset:{1024*cp}","tw"))
    F.add(lambda: e.wait(lg="tw"))
    for cp in range(2):
        for h in range(2): F.add(lambda cp=cp,h=h: e.ds(f"ds_read_b64_tr_b16 v[{AS+4*cp+2*h}:{AS+4*cp+2*h+1}], v{ra} offset:{1024*cp+256*h}","tr"))
    F.add(lambda: e.wait(lg="tr"))
    for cp in range(2): F.add(lambda cp=cp: (e.i(f"s_add_u32 s74, s95, {cp*32*1024}"), e.vm(f"buffer_store_dwordx4 v[{AS+4*cp}:{AS+4*cp+3}], v{L16}, s[28:31], s74 offen {c.st}","hs")))
def gate(e,c):
    skip=e.label()
    e.i(f"s_cmp_lg_u32 s6, 14\ns_cbranch_scc1 {skip}\ns_cmp_lg_u32 s70, 0\ns_cbranch_scc1 {skip}")
    e.i(f"v_lshrrev_b32 v{DW}, 5, v{LANE}\nv_lshlrev_b32 v{DW}, 4, v{DW}\nv_add_u32 v{DW}, {SCR+16384+1024}, v{DW}")
    for b in range(4):
        for k in range(8):
            if k%4==0: e.i(f"v_add_u32 v{DW+1}, s{XS[2*b+k//4]}, v{DW}")
            e.i(f"ds_read_b128 v[{FB+4*k}:{FB+4*k+3}], v{DW+1} offset:{32*(k%4)}")
        e.i("s_waitcnt lgkmcnt(0)")
        for k in range(8):
            s=8*b+k; e.i(f"v_mfma_f32_32x32x16_bf16 v[{AF}:{AF+15}], v[{FB+4*k}:{FB+4*k+3}], v[{4*s}:{4*s+3}], "+("0" if s==0 else f"v[{AF}:{AF+15}]"))
        e.i("s_nop 7")
    a=AF
    e.i(f"s_lshl_b32 s3, s5, 2\ns_add_u32 s3, s3, s7\ns_lshl_b32 s3, s3, 7\ns_add_u32 s3, s3, {G_OFF}\nv_and_b32 v{DW}, 31, v{LANE}\nv_lshlrev_b32 v{DW}, 2, v{DW}\ns_nop 15\ns_nop 3")
    e.i(f"v_cvt_pk_bf16_f32 v{a}, v{a}, v{a}\nv_lshlrev_b32 v{a}, 16, v{a}\nv_mul_f32 v{a}, {NLOG2E}, v{a}\nv_exp_f32 v{a}, v{a}\ns_nop 0\nv_add_f32 v{a}, 1.0, v{a}\nv_rcp_f32 v{a}, v{a}\ns_nop 0\nv_cvt_pk_bf16_f32 v{a}, v{a}, v{a}\nv_lshlrev_b32 v{a}, 16, v{a}")
    e.i(f"buffer_store_dword v{a}, v{DW}, s[28:31], s3 offen sc1\n{skip}:")
def p1_prologue(e,c):
    e.i("s_and_b32 s3, s2, 1\ns_lshl_b32 s3, s3, 3\ns_bfe_u32 s5, s2, 0x30003\ns_add_u32 s5, s5, s3")
    e.i("s_bfe_u32 s3, s2, 0x20001\ns_lshr_b32 s6, s2, 6\ns_lshl_b32 s6, s6, 2")
    if c.bal: e.i("s_add_u32 s7, s3, s5\ns_and_b32 s7, s7, 3\ns_cmp_eq_u32 s6, 12\ns_cselect_b32 s3, s7, s3")
    e.i("s_add_u32 s6, s6, s3")
    e.i("s_and_b32 s7, s4, 3\ns_lshr_b32 s70, s4, 2\ns_lshl_b32 s71, s4, 11\ns_lshl_b32 s72, s4, 10\ns_lshl_b32 s73, s70, 13\ns_lshl_b32 s3, s7, 10\ns_add_u32 s73, s73, s3")
    r8,p,t0,t1,t2=1,2,3,4,5
    e.i(f"v_lshrrev_b32 v{r8}, 3, v{LANE}\nv_and_b32 v{p}, 7, v{LANE}")
    for q in range(2):
        e.i(f"s_lshl_b32 s3, s4, 4\ns_add_u32 s3, s3, {8*q}\nv_add_u32 v{t0}, s3, v{r8}\nv_and_b32 v{t1}, 31, v{t0}")
        tau(e,DX+q,t1,t2)
        e.i(f"v_and_b32 v{t1}, 0x60, v{t0}\nv_add_u32 v{DX+q}, v{DX+q}, v{t1}\ns_lshl_b32 s3, s5, 7\nv_add_u32 v{DX+q}, s3, v{DX+q}\nv_bfe_u32 v{t0}, v{t0}, 1, 3\nv_xor_b32 v{t0}, v{t0}, v{p}\nv_lshlrev_b32 v{t0}, 4, v{t0}\nv_lshl_add_u32 v{DX+q}, v{DX+q}, 10, v{t0}")
        if q: e.i(f"v_subrev_u32 v{DX+1}, 1024, v{DX+1}")
    e.i(f"s_lshl_b32 s3, s4, 3\nv_add_u32 v{t0}, s3, v{r8}\nv_mul_u32_u24 v{t0}, 3584, v{t0}\ns_lshl_b32 s3, s6, 8\nv_add_u32 v{t0}, s3, v{t0}\nv_and_b32 v{t1}, 2, v{r8}\nv_xor_b32 v{t1}, v{t1}, v{p}")
    e.i(f"v_lshl_add_u32 v{DW}, v{t1}, 4, v{t0}\nv_xor_b32 v{t1}, 4, v{t1}\nv_lshl_add_u32 v{DW+1}, v{t1}, 4, v{t0}")
    e.i("s_lshr_b32 s97, s6, 2\ns_lshl_b32 s97, s97, 1\ns_add_u32 s97, s97, s5" if c.rot==1 else f"s_lshr_b32 s97, s6, 2\ns_add_u32 s97, s97, s5\ns_lshl_b32 s97, s97, {c.rot-1}" if c.rot else "s_mov_b32 s97, 0")
    e.i(f"s_and_b32 s3, s97, 7\ns_lshl_b32 s96, s3, 7\ns_mul_i32 s94, s3, {64*3584}\ns_cmp_lt_u32 s6, 14\ns_cselect_b32 s14, {512*3584}, 0\ns_cselect_b32 s18, {512*3584+1024}, 0\ns_cselect_b32 s34, {WS_SIZE}, 0")
    e.i(f"s_mov_b32 s10, {2048*1024}\ns_mov_b32 s11, 0x20000\ns_mov_b32 s15, 0x20000\ns_mov_b32 s19, 0x20000\ns_mov_b32 s35, 0x20000")
    e.i(f"s_lshl_b32 s3, s6, 1\ns_add_u32 s3, s3, s70\ns_lshl_b32 s3, s3, 5\nv_and_b32 v6, 15, v{LANE}\nv_lshl_add_u32 v6, v6, 1, s3")
    e.i("s_waitcnt lgkmcnt(0)")
    stamp(e,c,0,True); stamp(e,c,1)
    for k,pp in enumerate((38,40,50)): e.vm(f"global_load_ushort v{T+k}, v6, s[{pp}:{pp+1}]","c")
    d0=p1_dmas(e,0)
    e.i("s_mov_b32 s8, s36\ns_mov_b32 s9, s37"); d0[0](); d0[1]()
    e.i("s_mov_b32 s12, s56\ns_mov_b32 s13, s57\ns_sub_u32 s16, s58, 1024\ns_subb_u32 s17, s59, 0"); d0[2](); d0[3]()
    e.i("s_mov_b32 s32, s68\ns_mov_b32 s33, s69")
    srd(e,28,68,WS_SIZE)
    srd(e,88,68,4096); e.i(f"s_lshl_b32 s3, s6, 13\ns_add_u32 s3, s3, {S_OFF}\ns_add_u32 s88, s88, s3\ns_addc_u32 s89, s89, 0")
    srd(e,20,42,512*1024); srd(e,24,44,512*1024)
    for k in range(8): e.i(f"s_add_u32 s3, s97, {k}\ns_and_b32 s3, s3, 7\ns_lshl_b32 s{XS[k]}, s3, 7\ns_mul_i32 s{WT[k]}, s3, {64*3584}")
    for k in range(4): e.i(f"s_cmp_eq_u32 s70, 0\ns_cselect_b32 s{98+k}, s{XS[4*(k>>1)+(k&1)]}, s{XS[4*(k>>1)+2+(k&1)]}")
    stamp(e,c,20)
    for s in range(c.pre):
        for w in range(8):
            if c.tl[w]==str(s): touch1(e,w,*TCH_L[w])
        for f in (p1_dmas(e,s) if s else []): f()
        if s==0:
            sk=e.label()
            e.i(f"s_cmp_lg_u32 s6, 15\ns_cbranch_scc1 {sk}\ns_cmp_ge_u32 s4, 5\ns_cbranch_scc1 {sk}\ns_lshl_b32 s3, s5, 13\ns_add_u32 s3, s3, s72\ns_add_u32 s3, s3, {S_OFF}")
            e.i(f"v_mov_b32 v8, -1\nv_mov_b32 v9, -1\nv_mov_b32 v10, -1\nv_mov_b32 v11, -1\nbuffer_store_dwordx4 v[8:11], v{L16}, s[28:31], s3 offen sc1\ns_waitcnt vmcnt(0)\n{sk}:")
            sk=e.label()
            e.i(f"s_cmp_lg_u32 s6, 14\ns_cbranch_scc1 {sk}\ns_cmp_lg_u32 s4, 0\ns_cbranch_scc1 {sk}\ns_mov_b32 m0, {SCR+16384+1024}\ns_nop 0\nglobal_load_lds_dwordx4 v{L16}, s[62:63]\n{sk}:")
        if c.ibar and s<c.pre-1: e.i("s_barrier")
        stamp(e,c,21+s)
    e.i(f"s_lshl_b32 s3, s7, 3\nv_add_u32 v{t0}, s3, v{r8}\nv_bfe_u32 v{t1}, v{t0}, 1, 3\nv_xor_b32 v{t1}, v{t1}, v{p}\ns_lshl_b32 s3, s6, 5\nv_add_u32 v{t0}, s3, v{t0}\nv_lshlrev_b32 v{t0}, 10, v{t0}\nv_lshl_add_u32 v{DB}, v{t1}, 4, v{t0}")
    e.i(f"v_and_b32 v{t0}, 31, v{LANE}\nv_lshrrev_b32 v{t1}, 5, v{LANE}\nv_bfe_u32 v{t2}, v{t0}, 1, 3\nv_xor_b32 v{t1}, v{t1}, v{t2}\ns_lshl_b32 s3, s7, 12\nv_lshl_add_u32 v{t0}, v{t0}, 7, s3\nv_lshl_add_u32 v{RA}, v{t1}, 4, v{t0}")
    for k in range(1,4): e.i(f"v_xor_b32 v{RA+k}, {32*k}, v{RA}")
    e.i(f"v_lshrrev_b32 v{t0}, 5, v{LANE}\nv_bfe_u32 v{t1}, v{LANE}, 2, 2\nv_lshl_add_u32 v{t0}, v{t0}, 4, v{t1}\nv_lshlrev_b32 v{t0}, 7, v{t0}\nv_and_b32 v{t1}, 3, v{LANE}\nv_lshl_add_u32 v{t0}, v{t1}, 3, v{t0}")
    e.i(f"v_bfe_u32 v{t1}, v{LANE}, 4, 1\nv_lshl_add_u32 v{t0}, v{t1}, 10, v{t0}\nv_bfe_u32 v{t1}, v{LANE}, 3, 2\ns_lshl_b32 s3, s70, 1\nv_xor_b32 v{t1}, s3, v{t1}\nv_lshl_add_u32 v{t0}, v{t1}, 5, v{t0}\nv_add_u32 v{RW}, 0x10000, v{t0}\nv_xor_b32 v{RW+1}, 32, v{RW}")
    e.i(f"s_lshl_b32 s3, s5, 2\ns_add_u32 s3, s3, s7\ns_mul_i32 s95, s3, {176*1024}\ns_lshl_b32 s3, s6, 13\ns_add_u32 s75, s95, s3\ns_lshl_b32 s3, s70, 11\ns_add_u32 s75, s75, s3")
    e.i(f"s_lshl_b32 s3, s6, 1\ns_add_u32 s3, s3, s70\ns_add_u32 s3, s3, 112\ns_lshl_b32 s3, s3, 10\ns_add_u32 s95, s95, s3")
    e.i(f"s_mov_b32 s76, 0xffff0000\ns_mov_b32 s77, 0xffff0000\ns_mov_b32 s78, 0\ns_mov_b32 s79, 0xffff\ns_mov_b32 s80, 0\ns_mov_b32 s81, 0xffff0000")
    for k in range(3): e.i(f"s_cmp_eq_u32 s7, {k+1}\ns_cselect_b64 s[{82+2*k}:{83+2*k}], -1, 0")
    e.i(f"v_and_b32 v{SA}, 15, v{LANE}\ns_lshl_b32 s3, s4, 7\ns_add_u32 s3, s3, {SCR+16384}\nv_lshl_add_u32 v{SA}, v{SA}, 3, s3")
    groups=[]
    for s in range(14):
        sl=(s%4)*16384
        for gi in range(2 if s<8 else 4):
            b=FB+16*(len(groups)&1); rd=[]; mf=[]
            if s<8 or s>=10:
                for kk in range(2):
                    sp=2*gi+kk; ks=(4*s if s<8 else 8*(s-10))+sp
                    if s<8: rd.append(f"ds_read_b128 v[{4*ks}:{4*ks+3}], v{RA+sp} offset:{sl}")
                    for t in range(2):
                        f=b+8*kk+4*t
                        for h in range(2): rd.append(f"ds_read_b64_tr_b16 v[{f+2*h}:{f+2*h+1}], v{RW+t} offset:{sl+((32 if s<8 else 16)*sp+4*h)*128}")
                        a=AF+16*t; mf.append(f"v_mfma_f32_32x32x16_bf16 v[{a}:{a+15}], v[{f}:{f+3}], v[{4*ks}:{4*ks+3}], "+("0" if ks==0 else f"v[{a}:{a+15}]"))
            else:
                for kk in range(4):
                    ks=16*(s-8)+4*gi+kk; f=b+4*kk
                    rd.append(f"ds_read_b128 v[{f}:{f+3}], v{RA+kk} offset:{sl+gi*4096}")
                    mf.append(f"v_mfma_f32_32x32x16_bf16 v[{AS}:{AS+15}], v[{4*ks}:{4*ks+3}], v[{f}:{f+3}], "+("0" if ks==0 else f"v[{AS}:{AS+15}]"))
            groups.append((s,gi,rd,mf))
    return groups
```

```python
from gen1 import *
import gen3
from gen3 import kinfo,KN,kdesc,khead,TA,TS,BS,CR,setup_early,bdma_f,bdma_s,fl_load,fl_issue,fl_check,VW,VC,FLV,FLA
ACF=64; ACS=0; HB=128; VH1=214; RT0=215; RTT=216; RC=202; GV=206; WA=222
def mf(a,A,B,z): return f"v_mfma_f32_32x32x16_bf16 v[{a}:{a+15}], v[{A}:{A+3}], v[{B}:{B+3}], "+("0" if z else f"v[{a}:{a+15}]")
def hreg(c,n): return 8*n if n<7 else HB+8*((n-7)%c.nh)
def hload(e,c,n,mts=(0,1)):
    k,a,b=kinfo(n); hb=hreg(c,n)
    e.i(f"s_add_u32 s74, s{100+b}, s{TA[a]}" if k=="f" else f"s_add_u32 s74, s{80+a}, s{TS[b]}")
    if c.fakeh and n>=7: e.i(f"s_add_u32 s74, s100, s{TA[n%7]}")
    for mt in mts: e.vm(f"buffer_load_dwordx4 v[{hb+4*mt}:{hb+4*mt+3}], v{VH1 if mt else L16}, s[28:31], s74 offen {c.ld}",("h2",n))
def hdm(e,c,n):
    k,a,b=kinfo(n); hb=hreg(c,n)
    p=f"s_add_u32 s74, s{100+b}, s{TA[a]}" if k=="f" else f"s_add_u32 s74, s{80+a}, s{TS[b]}"
    return [DM(e,p,f"buffer_load_dwordx4 v[{hb+4*mt}:{hb+4*mt+3}], v{VH1 if mt else L16}, s[28:31], s74 offen {c.ld}",("h2",n)) for mt in range(2)]
def touchC(e):
    e.i(f"s_cmp_eq_u32 s70, 0\ns_cselect_b32 s20, s46, s48\ns_cselect_b32 s21, s47, s49\ns_lshr_b32 s3, s2, 3\ns_lshl_b32 s3, s3, 2\ns_add_u32 s3, s3, s7\ns_lshl_b32 s3, s3, 5")
    e.i(f"v_and_b32 v{T+12}, 31, v{LANE}\nv_add_u32 v{T+12}, s3, v{T+12}\nv_lshlrev_b32 v{T+12}, 7, v{T+12}")
    e.vm(f"global_load_dword v{FB+31}, v{T+12}, s[20:21]","t")
def setup_e2(e):
    t0,t1=T+10,T+12
    e.i(f"v_add_u32 v{VH1}, {176*1024}, v{L16}\nv_lshrrev_b32 v{t0}, 5, v{LANE}\nv_bfe_u32 v{t1}, v{LANE}, 2, 2\nv_lshl_add_u32 v{t0}, v{t0}, 2, v{t1}\nv_lshl_add_u32 v{t0}, v{t0}, 7, s71\nv_bfe_u32 v{t1}, v{LANE}, 3, 1\nv_lshl_add_u32 v{t0}, v{t1}, 6, v{t0}")
    e.i(f"v_bfe_u32 v{t1}, v{LANE}, 4, 1\nv_lshl_add_u32 v{t0}, v{t1}, 5, v{t0}\nv_and_b32 v{t1}, 3, v{LANE}\nv_lshl_add_u32 v{RT0}, v{t1}, 3, v{t0}")
def bread_f(n,dst):
    L=[f"v_xor_b32 v216, 64, v215",f"v_add_u32 v212, 0x10000, v215",f"v_add_u32 v213, 0x10000, v216",f"v_add_u32 v217, 0x20000, v215",f"v_add_u32 v221, 0x20000, v216"] if n==0 else []
    return L+[f"ds_read_b64_tr_b16 v[{dst+4*nt+2*h}:{dst+4*nt+2*h+1}], v{[(215,216),(212,213),(217,221)][BS[n]>>16][nt]} offset:{(BS[n]&65535)+h*1024}" for nt in range(2) for h in range(2)]
def setup_late(e,c):
    e.i("s_and_b32 s3, s4, 1\ns_cmp_eq_u32 s3, 1\ns_cselect_b32 s20, s48, s46\ns_cselect_b32 s21, s49, s47\ns_mov_b32 s22, 0x80000\ns_mov_b32 s23, 0x20000")
    e.i("s_lshl_b32 s3, s3, 5\ns_add_u32 s3, s3, 112\ns_lshr_b32 s82, s4, 1\ns_lshl_b32 s74, s82, 2\ns_add_u32 s3, s3, s74\ns_lshl_b32 s3, s3, 10\ns_add_u32 s80, s73, s3\ns_lshl_b32 s82, s82, 7")
    e.i("s_lshr_b32 s3, s99, 2\ns_xor_b32 s3, s3, s98\ns_and_b32 s3, s3, 1")
    e.i("s_lshl_b32 s74, s3, 14\ns_xor_b32 s81, s74, 0x4000\ns_add_u32 s81, s81, s80\ns_add_u32 s80, s80, s74\ns_lshl_b32 s74, s3, 9\ns_xor_b32 s83, s74, 0x200\ns_add_u32 s83, s83, s82\ns_add_u32 s82, s82, s74")
    r8,t0=VC+1,T+12
    e.i(f"v_lshrrev_b32 v{r8}, 3, v{LANE}\nv_lshrrev_b32 v{t0}, 4, v{LANE}\nv_xor_b32 v{t0}, v{t0}, v{LANE}\nv_and_b32 v{t0}, 7, v{t0}\ns_lshl_b32 s3, s99, 16\nv_lshl_add_u32 v{t0}, v{t0}, 4, s3\nv_lshl_add_u32 v{VC}, v{r8}, 10, v{t0}\nv_xor_b32 v{VC+1}, 64, v{VC}")
def publish(e,c):
    e.wait(vm="hs"); e.wait(vm=("h",1)); e.i("s_barrier"); flag_store(e,2,5,6); stamp(e,c,33)
def g0_groups(c):
    G=[]
    for n in range(22):
        k,a,bb=kinfo(n); b=FB+8*(n&1)
        if c.stg and 7<=n<14: b=8*(n-7)
        rd=[] if c.stg and 7<=n<14 else bread_f(n,b) if k=="f" else [f"ds_read_b128 v[{b+4*nt}:{b+4*nt+3}], v{RC+bb} offset:{CR[a][nt]*16384}" for nt in range(2)]
        G.append((14,n,rd,[mf((ACF if k=="f" else ACS)+(2*nt+mt)*16,b+4*nt,hreg(c,n)+4*mt,n in (0,14)) for nt in range(2) for mt in range(2)]))
    return G
def run_groups(e,c,groups,g0,g1,F,D,pre,sync,per):
    RQ=Fill()
    def reads(g):
        s,gi=groups[g][:2]
        if s==14:
            while any(getattr(x,'t',None)==('b',gi) for x in D.q): D.run(1)
            RQ.add(lambda: e.wait(vm=("b",gi)))
        for r in groups[g][2]: RQ.add(lambda r=r: e.ds(r,("r",g)) if r.startswith("ds_") else e.i(r))
    if g0==0 or groups[g0-1] is None: reads(g0); RQ.flush()
    for g in range(g0,g1):
        s,gi,rd,mfs=groups[g]
        nf = g+1<g1 and groups[g+1][1]==0 and groups[g+1][0]<14
        e.wait(lg=("r",g))
        pre(s,gi)
        if s==14:
            while any(getattr(x,'t',None)==('h2',gi) for x in D.q): D.run(1)
            e.wait(vm=("h2",gi))
        if c.prio==1: e.i('s_setprio 1')
        for k,m in enumerate(mfs):
            if k==(c.pre_bar if nf else 0) and g+1<g1:
                if nf: sync(groups[g+1][0])
                reads(g+1)
            dr=D.q and (s<11 or s==14 or k%c.dp==0)
            if dr and c.pp and hasattr(D.q[0],"pre"):
                ents=[D.q.pop(0)]
                if c.pp==2 and D.q and hasattr(D.q[0],"pre") and len(D.q)>3-k: ents.append(D.q.pop(0))
                l1,l2=e.label(),e.label(); st=e.state()
                e.i(f"s_cbranch_vccnz {l1}")
                for x in ents: x()
                e.i(f"{l1}:"); e.i(m); e.i(f"s_cbranch_vccz {l2}"); e.restore(st)
                for x in ents: x()
                e.i(f"{l2}:"); RQ.run(c.spread if k<3 else 99)
            else:
                if dr and m and hasattr(D.q[0],"pre"): D.q[0].pre()
                e.i(m); RQ.run(c.spread if k<3 else 99)
                if dr: D.run(1)
            if c.nof and 10<=s<14: F.q=[]
            if not D.q or s>=11: F.run(per(s))
            if c.prio==1 and k==3: e.i('s_setprio 0')
def body(e,c):
    groups=p1_prologue(e,c)+g0_groups(c)
    F=Fill(); D=Fill(); z={}
    def sync(s):
        if s in (11+c.slow,12+c.slow): F.flush()
        if s<=11: D.flush()
        if s==11: cnt_check(e); e.wait(vm=("h",0))
        e.wait(vm=("d",s),lg="*"); e.i("s_barrier"); stamp(e,c,2+s)
        if s==0:
            sk=e.label(); e.i(f"s_cmp_lg_u32 s6, 15\ns_cbranch_scc1 {sk}\ns_cmp_lg_u32 s4, 0\ns_cbranch_scc1 {sk}\ns_lshl_b32 s3, s5, 2\nv_mov_b32 v1, s3\nv_mov_b32 v2, 1\ns_mov_b64 exec, 1\nglobal_store_dword v1, v2, s[66:67] sc1\ns_mov_b64 exec, -1\n{sk}:")
        if s==8-c.dist: e.i(f"v_add_u32 v{DW}, 128, v{DW}\nv_add_u32 v{DW+1}, 128, v{DW+1}")
        if s==8:
            a,b2=T+8,T+9
            e.i(f"v_and_b32 v{a}, 15, v{LANE}\nv_lshrrev_b32 v{b2}, 5, v{LANE}\nv_lshrrev_b32 v{RA}, 1, v{a}\nv_xor_b32 v{b2}, v{b2}, v{RA}\ns_lshl_b32 s3, s70, 11\nv_lshl_add_u32 v{a}, v{a}, 7, s3\nv_lshl_add_u32 v{a}, v{b2}, 4, v{a}\nv_bfe_u32 v{b2}, v{LANE}, 4, 1\nv_lshl_add_u32 v{RA}, v{b2}, 16, v{a}")
            for k in range(1,4): e.i(f"v_xor_b32 v{RA+k}, {32*k}, v{RA}")
            e.i(f"v_mul_u32_u24 v{b2}, {65536-1024}, v{b2}\nv_subrev_u32 v{b2}, 0x10000, v{b2}\nv_lshrrev_b32 v{a}, 5, v{LANE}\nv_lshlrev_b32 v{a}, 10, v{a}\nv_sub_u32 v{b2}, v{b2}, v{a}\nv_add_u32 v{RW}, v{RW}, v{b2}\nv_add_u32 v{RW+1}, v{RW+1}, v{b2}")
        if s==11: flag_store(e,1,5,6); setup_e2(e)
        for s2 in ([s+c.dist] if s else range(c.pre,c.dist+1)):
            for f in ([] if s2>(9 if z.get('on') else 13) else p1_dmas(e,s2)[:2 if z.get('on') and s2<8 else 4]): D.add(f)
        for w in range(8):
            if c.tl[w]==chr(97+s): D.add(lambda w=w: touch1(e,w,*TCH_L[w]))
            if c.ta>=0 and c.tas[w]!='x' and s==c.ta+int(c.tas[w]): D.add(lambda w=w: touch1(e,w,*TCH_A[w]))
            if c.tb>=0 and c.tbs[w]!='x' and s==c.tb+int(c.tbs[w]): D.add(lambda w=w: touch1(e,w,*TCH_B[w]))
        if s>=11:
            for n in {11:(0,1),12:(2,3),13:(4,5,6)}[s]:
                for f in bdma_f(e,n): D.add(f)
    def hq(n0,n1):
        for n in range(n0,n1):
            D.q+=hdm(e,c,n)
    def stage(n):
        e.wait(vm=("b",n))
        for r in bread_f(n,8*(n-7)): e.ds(r,("st",n))
    def p2z(n):
        if n in (2,4): D.q+=bdma_f(e,8+n)+bdma_f(e,9+n)
    def p2common(n):
        if c.stg==2: return
        if not c.stg:
            for f in {2:lambda: bdma_f(e,10)+bdma_f(e,11),4:lambda: bdma_f(e,12)+bdma_f(e,13),7:lambda: bdma_s(e,0,0),9:lambda: bdma_s(e,0,1),12:lambda: bdma_s(e,1,0),14:lambda: bdma_s(e,1,1)}.get(n if n<7 or not c.noc else -1,lambda: [])(): D.add(f)
            return
        if n==1: setup_late(e,c)
        for q in {2:(7,8),5:(10,11),7:(12,13),6:(9,)}.get(n,()): stage(q)
        for f in {2:lambda: bdma_f(e,10)+bdma_f(e,11),3:lambda: bdma_s(e,0,1),4:lambda: bdma_f(e,12)+bdma_f(e,13),6:lambda: bdma_s(e,1,0),7:lambda: bdma_s(e,0,0),8:lambda: bdma_s(e,1,1)}.get(n,lambda: [])(): D.add(f)
        if n==8: e.wait(lg="*")
    def pre(s,gi):
        if (s,gi)==(8,1): ffn_epi(e,c,F,0)
        if (s,gi)==(9,0): cnt_issue(e)
        if (s,gi)==(10,0):
            F.flush()
            if not c.zl: z["st"]=e.state(); e.i("s_cmp_ge_u32 s6, 14\ns_cbranch_scc1 Lzpath")
            setup_early(e,c)
        if (s,gi)==(10,1): ssm_a(e,F)
        if (s,gi)==(11+c.slow,0): ssm_b(e,F)
        if (s,gi)==(c.fi//4,c.fi%4): D.add(lambda: fl_issue(e,2))
        if (s,gi)==(c.fc//4,c.fc%4): D.add(lambda: fl_check(e,1)); hq(0,c.he)
        if (s,gi)==(13,0): F.add(lambda: poll_prep(e))
        if (s,gi)==(13,3): F.add(lambda: poll_issue(e))
        if s<14: return
        n=gi
        if c.stg==2:
            if n==0:
                stamp(e,c,16); D.flush(); F.flush()
                if c.bl:
                    e.i("s_nop 7\ns_nop 1"); ffn_epi(e,c,F,1,c.pk); F.flush()
                    if c.bl==2: poll_check(e); ssm_c(e,c,F); F.flush()
                e.i("s_barrier"); stamp(e,c,24)
                hq(c.he,7); D.q+=bdma_f(e,7)+bdma_f(e,8)
            p2z(n)
            if n==c.eg:
                if not c.bl:
                    if n==0: e.i("s_nop 7")
                    ffn_epi(e,c,F,1,1)
                if c.bl<2: F.add(lambda: poll_check(e)); ssm_c(e,c,F)
                F.add(lambda: D.q.extend(bdma_f(e,9)))
                while F.q: F.run(c.lp); D.run(1)
                stamp(e,c,19)
            if n==c.pg: e.wait(vm="hs"); e.wait(vm=("h",1)); e.i("s_barrier"); flag_store(e,3,5,6); stamp(e,c,33)
            if n==7:
                D.flush(); e.i("Lp1end:"); setup_late(e,c)
                if c.eqb==2: e.i("s_setprio 2")
                for f in bdma_s(e,0,0): f()
                for q in range(7,14):
                    stage(q)
                    if q in (8,11,13):
                        e.wait(lg=("st",q))
                        for f in bdma_s(e,*{8:(0,1),11:(1,0),13:(1,1)}[q]): f()
                    if q==c.fiss: fl_issue(e)
                    if q==c.fq:
                        gen3.setup_late2(e,c)
                        if c.eqb==1: e.i('s_barrier')
                        fl_check(e,3); stamp(e,c,34)
                        for q2 in range(7,7+c.nh): hload(e,c,q2)
                gen3.epi_loads(e,c)
            if n>=8 and n-1+c.nh<22: hload(e,c,n-1+c.nh)
            if n!=15: return
        if n==0 and not c.stg:
            stamp(e,c,16); D.flush(); F.flush(); e.i("s_barrier"); stamp(e,c,24); e.i("s_nop 7")
            ffn_epi(e,c,F,1,1); F.flush(); stamp(e,c,17)
            for f in bdma_f(e,7)[:c.b7]: f()
            if c.tc==1: touchC(e)
            poll_check(e); ssm_c(e,c,F); F.flush(); stamp(e,c,19)
            if c.tc==2: touchC(e)
            e.wait(vm=("h",1)); e.i("s_barrier"); flag_store(e,2,5,6); stamp(e,c,33)
            hq(c.he,7); D.flush()
            for f in bdma_f(e,7)[c.b7:]+bdma_f(e,8)+bdma_f(e,9): f()
            e.i("Lp1end:"); setup_late(e,c); gen3.setup_late2(e,c)
            if c.prio==3: sk=e.label(); e.i(f"s_cmp_eq_u32 s70, 0\ns_cbranch_scc1 {sk}\ns_setprio 1\n{sk}:")
        if n==0 and c.stg:
            stamp(e,c,16); D.flush(); F.flush(); e.i("s_barrier"); stamp(e,c,24)
            for f in bdma_f(e,7)+bdma_f(e,8): D.add(f)
            hq(c.he,7)
            if not c.b7: e.i("s_nop 7")
            D.run(c.b7); ffn_epi(e,c,F,1,1)
            while F.q: F.run(c.lp); D.run(1)
            D.flush(); stamp(e,c,17); poll_check(e); ssm_c(e,c,F); F.add(lambda: D.q.extend(bdma_f(e,9)))
        if n==c.p2 and c.stg: e.wait(vm=("h",1)); e.i("s_barrier"); flag_store(e,2,5,6); stamp(e,c,33)
        if n==4 and c.stg: F.flush(); D.flush(); stamp(e,c,19); e.i("Lp1end:"); gen3.setup_late2(e,c)
        p2common(n)
        if n==c.pg: e.wait(vm="hs"); e.i("s_barrier"); flag_store(e,3,5,6)
        if c.stg==2: n=-15
        if n==c.f2i or n==c.f3i: fl_issue(e)
        if n==c.f2c:
            stamp(e,c,32); fl_check(e,2); stamp(e,c,34)
            for q in range(7,7+c.nh): hload(e,c,q)
        if n==c.f3c: stamp(e,c,38); fl_check(e,3); stamp(e,c,39)
        if n>=8 and n-1+c.nh<14: hq(n-1+c.nh,n+c.nh)
        if n>=c.f3c:
            hq(14 if n==c.f3c else n-1+c.nh,min(22,n+c.nh))
        if n==c.f3c+1: gen3.epi_loads(e,c)
        if n in (2,4,7,8,10,12,14,16,18,20): stamp(e,c,40+n)
        if abs(n)==15:
            F.add(lambda: e.wait(vm="g"))
            for mt in range(2): F.text(e,f"v_sub_f32 v{T+10+mt}, 1.0, v{GV+mt}\nv_cvt_pk_bf16_f32 v{T+10+mt}, v{T+10+mt}, v{T+10+mt}\nv_lshlrev_b32 v{T+10+mt}, 16, v{T+10+mt}")
            for i in range(64): F.text(e,f"v_mul_f32 v{ACF+i}, v{T+10+((i>>4)&1)}, v{ACF+i}")
            for cc in range(2):
                xs=T+6+2*cc; o=232+4*cc
                for kk in range(2):
                    F.text(e,f"v_lshlrev_b32 v{T}, 16, v{xs+kk}\nv_lshlrev_b32 v{T+1}, 16, v{T+4+kk}\nv_and_b32 v{T+2}, 0xffff0000, v{xs+kk}\nv_and_b32 v{T+3}, 0xffff0000, v{T+4+kk}\nv_mul_f32 v{T}, v{T}, v{T+1}\nv_mul_f32 v{T+2}, v{T+2}, v{T+3}\nv_cvt_pk_bf16_f32 v{T}, v{T}, v{T+2}")
                    F.text(e,f"v_lshlrev_b32 v{o+2*kk}, 16, v{T}\nv_and_b32 v{o+2*kk+1}, 0xffff0000, v{T}\nv_mul_f32 v{o+2*kk}, v{o+2*kk}, v{GV+2+cc}\nv_mul_f32 v{o+2*kk+1}, v{o+2*kk+1}, v{GV+2+cc}")
            F.text(e,f"v_add_u32 v{T}, 0x10000, v{GV+5}")
    per=lambda s: {8:5,9:6,10:5,11:5,12:5,13:5,14:c.p14}.get(s,4)
    ssm_consts(e,F); F.flush()
    if c.pp: e.i(SETV)
    if c.zl: z["st"]=e.state(); e.i("s_cmp_ge_u32 s6, 14\ns_cbranch_scc1 Lzpath")
    sync(0)
    run_groups(e,c,groups,0,len(groups),F,D,pre,sync,per)
    F.flush(); D.flush()
    final(e,c); prof_end(e,c,0); dbg_time(e,c); e.i("Lexit:\ns_endpgm")
    e.restore(z["st"]); e.i("Lzpath:")
    if c.zl:
        z["on"]=1; GZ=[(s_,gi,[r for r in rd if "b128" in r],mfs if s_>=8 else [""]*4) for s_,gi,rd,mfs in groups[:24]]
        sync(0); run_groups(e,c,GZ,0,24,F,D,lambda s_,gi: cnt_issue(e) if (s_,gi)==(9,0) else None,sync,per); D.flush()
    e.i("s_nop 7\ns_nop 3")
    ssm_a(e,F); F.flush(); cnt_check(e); e.wait(vm="*",lg="*"); e.i("s_barrier"); stamp(e,c,16)
    ssm_b(e,F); F.flush(); poll_prep(e); gate(e,c); stamp(e,c,17); poll_issue(e); poll_check(e); ssm_c(e,c,F); F.flush(); stamp(e,c,19)
    e.wait(vm="*",lg="*"); e.i("s_barrier"); flag_store(e,3,5,6); stamp(e,c,33)
    setup_early(e,c); setup_e2(e); fl_issue(e,2)
    for n in range(10):
        for f in bdma_f(e,n): f()
    fl_check(e,1); hq(0,7); D.flush()
    G=[None]+g0_groups(c)[:7]
    if c.stg==2: run_groups(e,c,G,1,8,F,D,lambda s,n: p2z(n),None,per); D.flush(); G[5]=(0,0,[])
    elif c.stg: run_groups(e,c,G,1,5,F,D,lambda s,n: p2common(n),None,per); D.flush()
    e.wait(vm=("b",4))
    for r in G[5 if c.stg else 1][2]: e.i(r)
    e.wait(vm="*",lg="*"); e.i("s_branch Lp1end")
def final(e,c):
    srd(e,24,64,2048*2048); stamp(e,c,35); e.i("s_nop 7")
    for i in range(4):
        nt,mt=i>>1,i&1
        for qq in range(4):
            for r in (0,2): x=16*i+4*qq+r; e.i(f"v_pk_fma_f32 v[{ACF+x}:{ACF+x+1}], v[{GV}:{GV+1}], v[{ACS+x}:{ACS+x+1}], v[{ACF+x}:{ACF+x+1}] op_sel:[{mt},0,0] op_sel_hi:[{mt},1,1]")
            e.ds(f"ds_write_b128 v{WA+4*mt+qq}, v[{ACF+16*i+4*qq}:{ACF+16*i+4*qq+3}] offset:{nt*128}","rw")
    e.wait(lg="*"); e.i("s_barrier"); stamp(e,c,36)
    for cc in range(2):
        for p in range(8): e.ds(f"ds_read_b128 v[{32*cc+4*p}:{32*cc+4*p+3}], v{T if cc else GV+5} offset:{p*2048}",("rr",cc,p))
    for cc in range(2):
        o=232+4*cc
        for p in range(8):
            e.wait(lg=("rr",cc,p))
            for r in (0,2): e.i(f"v_pk_add_f32 v[{o+r}:{o+r+1}], v[{o+r}:{o+r+1}], v[{32*cc+4*p+r}:{32*cc+4*p+r+1}]")
        e.i(f"s_mov_b32 s3, {cc*65536}")
        e.vm(f"buffer_store_dwordx4 v[{o}:{o+3}], v{GV+4}, s[24:27], s3 offen {c.ost}")
def gen(c):
    e=E(); common_prologue(e,c); body(e,c)
    hdr=open("cdna_kernels/"+KN+".s.ref").read().split("; Override")[0]
    n=KN+"_kernel"
    hdr+="""; One persistent launch, 256 workgroups x 8 waves (one per CU, all co-resident).
; Hand-offs: write-through stores, drained, then flags; d_debug words tell that this launch's reset is done.
"""
    return hdr+"; @launch grid=(256,1,1) block=(512,1,1) lds=163840\n"+'.amdgcn_target "amdgcn-amd-amdhsa--gfx950"\n.text\n'+khead(n)+"\n".join(e.L)+'\n.section .rodata,"a"\n'+kdesc(n)
if __name__=="__main__":
    import sys
    c=Cfg(); c.merged=1; c.ld="sc1"; c.rot2=1; c.fiss=11; c.ost="sc1"; c.nh=5; c.ta=1; c.tb=-1; c.dp=1; c.dist=2; c.fi=4*11+3; c.fc=4*12+1; c.p14=5; c.cdef=0; c.tbs='00112233'; c.he=3; c.b7=2; c.f2i=4; c.f2c=6; c.f3i=8; c.f3c=9; c.pg=1; c.stg=2; c.xb=''; c.pp=0; c.bl=2; c.fq=13; c.zl=1; c.eqb=0; c.eg=0; c.tc=0; c.rot=3; c.ibar=1; c.fakeh=0; c.noc=0; c.p2=1; c.lp=12; c.pk=1; c.nod=0; c.nof=0; c.prio=0
    for a in sys.argv[2:]:
        k,v=a.split("="); setattr(c,k,int(v) if v.lstrip("-").isdigit() and k not in ('tl','tas','tbs') else v)
    open(sys.argv[1],"w").write(gen(c))
```
